```python
import torch

def _softmax(x, axis=-1):
    return torch.softmax(x, dim=axis)

def _gelu(x):
    return torch.nn.functional.gelu(x, approximate='tanh')

def _silu(x):
    return torch.nn.functional.silu(x)

def _sigmoid(x):
    return torch.sigmoid(x)

def _layernorm(x, axis=-1, eps=1e-05):
    m = x.mean(dim=axis, keepdim=True)
    v = x.var(dim=axis, keepdim=True, unbiased=False)
    return (x - m) / torch.sqrt(v + eps)

def _scatter_add(tgt, idx, src, axis=0):
    return tgt.clone().index_add_(axis, idx, src)

def _segment_sum(src, seg, n):
    out = torch.zeros((n,) + src.shape[1:], dtype=src.dtype)
    return out.index_add_(0, seg, src)

def _pad(x, pw):
    flat = tuple((v for pair in reversed(pw) for v in pair))
    return torch.nn.functional.pad(x, flat)
kernel_name = 'recurrent_scan__ssm_conv_h3__mixer_gmlp__prompt'

def setup_inputs():

    _w = lambda a: (lambda t: t.to(torch.bfloat16) if t.is_floating_point() else t)(torch.as_tensor(a))

    def _A_setup():
        B, S, D = (1, 2048, 448)
        ks = 4
        return {'q': _w((lambda *s: torch.randn(*s, dtype=torch.bfloat16) * 0.05)(B, S, D)), 'k': _w((lambda *s: torch.randn(*s, dtype=torch.bfloat16) * 0.2)(B, S, D)), 'v': _w((lambda *s: torch.randn(*s, dtype=torch.bfloat16) * 0.2)(B, S, D)), 'shift_k': _w((lambda *s: torch.randn(*s, dtype=torch.bfloat16) * 0.2)(D, ks) * 0.5), 'ssm_k': _w((lambda *s: torch.randn(*s, dtype=torch.bfloat16) * 0.2)(D, S) * (1.0 / S ** 0.5)), 'ssm_D': _w((lambda *s: torch.randn(*s, dtype=torch.bfloat16) * 0.2)(D))}
    _A_in = _A_setup()

    def _B_setup():
        B, S, D, F = (1, 2048, 448, 1792)
        Fh = F // 2
        return {'x': _w((lambda *s: torch.randn(*s, dtype=torch.bfloat16) * 0.05)(B, S, D)), 'w_in': _w((lambda *s: torch.randn(*s, dtype=torch.bfloat16) * 0.8)(D, 2 * Fh)), 'w_sp': _w(0.01 * (lambda *s: torch.randn(*s, dtype=torch.bfloat16) * 0.8)(S, S)), 'b_sp': _w(1.0 + 0.01 * (lambda *s: torch.randn(*s, dtype=torch.bfloat16) * 0.1)(S)), 'w_out': _w((lambda *s: torch.randn(*s, dtype=torch.bfloat16) * 0.1)(Fh, D))}
    _B_in = _B_setup()
    return {'A_q': _A_in['q'], 'A_k': _A_in['k'], 'A_v': _A_in['v'], 'A_shift_k': _A_in['shift_k'], 'A_ssm_k': _A_in['ssm_k'], 'A_ssm_D': _A_in['ssm_D'], 'B_x': _B_in['x'], 'B_w_in': _B_in['w_in'], 'B_w_sp': _B_in['w_sp'], 'B_b_sp': _B_in['b_sp'], 'B_w_out': _B_in['w_out']}

def reference(A_q, A_k, A_v, A_shift_k, A_ssm_k, A_ssm_D, B_x, B_w_in, B_w_sp, B_b_sp, B_w_out):

    def _A_ref(q, k, v, shift_k, ssm_k, ssm_D):
        B, S, D = q.shape
        ks = shift_k.shape[-1]
        k_pad = _pad(k, ((0, 0), (ks - 1, 0), (0, 0)))
        k_shift = torch.zeros_like(k)
        for t in range(ks):
            k_shift = k_shift + k_pad[:, t:t + S, :] * shift_k[:, ks - 1 - t][None, None, :]
        kv = k_shift * v
        L = 2 * S
        kv_pad = _pad(kv, ((0, 0), (0, S), (0, 0)))
        kf_pad = _pad(ssm_k, ((0, 0), (0, S)))
        kv_f = (lambda x, axes=(-2, -1): torch.fft.rfft2(x.float(), dim=axes))(kv_pad[:, None, :, :], axes=(1, 2))
        kf_f = (lambda x, axes=(-2, -1): torch.fft.rfft2(x.float(), dim=axes))(kf_pad[:, None, :], axes=(1, 2))
        kf_f = (lambda x, *d: x.permute(*d))(kf_f, 1, 2, 0)
        y_f = kv_f * kf_f[None, :, :, :]
        y = (lambda x, s, axes=(-2, -1): torch.fft.irfft2(x, s=s, dim=axes).to(torch.bfloat16))(y_f, (1, L), axes=(1, 2))[:, 0, :S, :]
        y = y + kv * ssm_D[None, None, :]
        return q * y

    def _B_ref(x, w_in, w_sp, b_sp, w_out):
        B, S, D = x.shape
        F = w_in.shape[-1]
        Fh = F // 2
        z = _gelu(torch.einsum('bsd,df->bsf', x, w_in))
        z1 = z[..., :Fh].clone()
        z2 = _layernorm(z[..., Fh:], axis=-1)
        g = torch.einsum('ts,bsf->btf', w_sp, z2) + b_sp[None, :, None]
        return torch.einsum('bsf,fd->bsd', z1 * g, w_out)
    x = A_q
    xn = _layernorm(x, axis=-1)
    s = _A_ref(xn, A_k, A_v, A_shift_k, A_ssm_k, A_ssm_D)
    g = _silu(_B_ref(xn, B_w_in, B_w_sp, B_b_sp, B_w_out))
    return x + s * g
```

```python
import re

_REG = re.compile(r"\b([vas])(?:(\d+)|\[(\d+):(\d+)\])")

def regs_of(tok):
    out = []
    for m in _REG.finditer(tok):
        k = m.group(1)
        if m.group(2) is not None:
            out.append((k, int(m.group(2))))
        else:
            out += [(k, i) for i in range(int(m.group(3)), int(m.group(4)) + 1)]
    t = tok.strip()
    if t in ("vcc", "vcc_lo", "vcc_hi"):
        out.append(("s", "vcc"))
    if t in ("m0",):
        out.append(("s", "m0"))
    if t in ("exec",):
        out.append(("s", "exec"))
    return out

TRANS = ("v_exp_f32", "v_log_f32", "v_rcp_f32", "v_rsq_f32", "v_sqrt_f32", "v_sin_f32", "v_cos_f32")

def split_ops(rest):
    ops, cur, d = [], "", 0
    for ch in rest:
        if ch == "[": d += 1
        if ch == "]": d -= 1
        if ch == "," and d == 0:
            ops.append(cur.strip()); cur = ""
        else:
            cur += ch
    if cur.strip(): ops.append(cur.strip())
    return ops

class Asm:
    def __init__(self, autonop=True):
        self.lines = []
        self._lbl = 0
        self.autonop = autonop
        self.pos = 0
        self.w = {}
        self.mfma_c = {}
        self.st = {}
        self.nops = 0
    def __call__(self, s):
        for l in s.strip("\n").split("\n"):
            l = l.strip()
            if not l: continue
            if l.startswith(";"):
                self.lines.append("    " + l); continue
            if l.endswith(":"):
                self.lines.append(l); continue
            self.inst(l)
    def inst(self, l):
        code = l.split(";")[0].strip()
        parts = code.split(None, 1)
        op = parts[0]
        rest = parts[1] if len(parts) > 1 else ""
        ops = split_ops(rest)
        if ops:
            last = ops[-1].split()
            mods = last[1:]
            ops[-1] = last[0] if last else ""
        else:
            mods = []
        need = 0
        reads, writes = [], []
        kind = None
        is_valu = op.startswith("v_") and not op.startswith("v_mfma")
        is_mfma = op.startswith("v_mfma")
        is_vmem = op.startswith("buffer_") or op.startswith("global_")
        is_ds = op.startswith("ds_")
        R = lambda i: regs_of(ops[i]) if i < len(ops) else []
        if is_mfma:
            writes = R(0); reads = R(1) + R(2); creads = R(3)
            passes = 8 if "32x32" in op else 4
            kind = ("mfma", passes)
            for r in reads:
                need = max(need, self._dist(r, {"valu": 2, "trans": 2, "dot": 3, "mfma8": 12, "mfma4": 8}))
            same = (R(0) == creads)
            for r in creads:
                p = self.w.get(r)
                if p and p[1].startswith("mfma"):
                    if not (same and p[2] == tuple(creads) and p[1] == "mfma%d" % passes):
                        need = max(need, self._dist(r, {"mfma8": 10, "mfma4": 6}))
                else:
                    need = max(need, self._dist(r, {"valu": 2, "trans": 2, "dot": 3}))
            need = max(need, self._dist(("s", "exec"), {"valu": 4}))
        elif is_valu:
            if op.startswith("v_cmp"):
                writes = R(0); reads = sum((R(i) for i in range(1, len(ops))), [])
            elif op.startswith("v_permlane") and "swap" in op:
                writes = R(0) + R(1); reads = R(0) + R(1)
            elif op in ("v_add_co_u32", "v_addc_co_u32", "v_sub_co_u32"):
                writes = R(0) + R(1); reads = sum((R(i) for i in range(2, len(ops))), [])
            else:
                writes = R(0); reads = sum((R(i) for i in range(1, len(ops))), [])
                if op.startswith("v_fmac") or op.startswith("v_dot2c") or op.startswith("v_pk_fmac"):
                    reads = reads + R(0)
            isdot = op.startswith("v_dot")
            istrans = op in TRANS
            kind = "dot" if isdot else ("trans" if istrans else "valu")
            for r in reads:
                if r[0] == "s":
                    need = max(need, self._dist(r, {"valu": 2}))
                    continue
                t = {"mfma8": 12, "mfma4": 8}
                if not istrans: t["trans"] = 1
                p = self.w.get(r)
                if p and p[1] == "dot":
                    acc = (R(0)[0] == r) and p[2] == op
                    if not acc: t["dot"] = 3
                if op.startswith("v_permlane"):
                    t.update({"valu": 2, "trans": 2, "dot": 3})
                if op in ("v_readfirstlane_b32", "v_readlane_b32"):
                    t.update({"valu": 1, "trans": 1, "dot": 3})
                if "dpp" in op or any(m.startswith("row_") or m.startswith("quad_perm") for m in mods):
                    t.update({"valu": 2, "trans": 2, "dot": 3})
                need = max(need, self._dist(r, t))
            for r in writes:
                if r[0] == "s": continue
                t = {"mfma8": 12, "mfma4": 8}
                p = self.w.get(r)
                if p and p[1] == "dot" and p[2] != op: t["dot"] = 3
                need = max(need, self._dist(r, t))
                if r in self.mfma_c:
                    pp, passes = self.mfma_c[r]
                    need = max(need, (7 if passes == 8 else 3) - (self.pos - pp - 1))
                if r in self.st:
                    need = max(need, 2 - (self.pos - self.st[r] - 1))
        elif is_vmem or is_ds:
            lds = "lds" in mods
            isload = ("load" in op or "read" in op or "bpermute" in op or "swizzle" in op) and not lds
            allr = sum((R(i) for i in range(len(ops))), [])
            if isload:
                writes = R(0); reads = sum((R(i) for i in range(1, len(ops))), [])
            else:
                reads = allr
            if lds: reads = reads + [("s", "m0")]
            kind = "mem"
            for r in reads:
                if r[0] == "s":
                    if r[1] == "m0":
                        need = max(need, self._dist(r, {"salu": 1}))
                    elif is_vmem:
                        need = max(need, self._dist(r, {"valu": 5}))
                else:
                    need = max(need, self._dist(r, {"mfma8": 12, "mfma4": 8, "dot": 3, "trans": 1}))
            for r in writes:
                need = max(need, self._dist(r, {"mfma8": 12, "mfma4": 8}))
                if r in self.st:
                    need = max(need, 1 - (self.pos - self.st[r] - 1))
        elif op.startswith("s_"):
            kind = "salu"
            if op in ("s_nop",):
                n = int(ops[0], 0) + 1
                self.lines.append("    " + l); self.pos += n; return
            if op.startswith("s_cmp") or op.startswith("s_cbranch") or op in ("s_branch", "s_barrier", "s_waitcnt", "s_endpgm", "s_setprio", "s_sleep"):
                writes = []
                reads = sum((R(i) for i in range(len(ops))), []) if op.startswith("s_cmp") else []
                if op in ("s_cbranch_vccz", "s_cbranch_vccnz"): reads = [("s", "vcc")]
            else:
                writes = R(0); reads = sum((R(i) for i in range(1, len(ops))), [])
                if "saveexec" in op: writes = writes + [("s", "exec")]
            for r in reads:
                need = max(need, self._dist(r, {"valu": 2}))
        if need > 0 and self.autonop:
            n = need
            while n > 0:
                k = min(n, 16)
                self.lines.append("    s_nop %d" % (k - 1))
                self.pos += k; n -= k
                self.nops += 1
        self.lines.append("    " + l)
        if is_mfma:
            for r in writes:
                self.w[r] = (self.pos, "mfma%d" % kind[1], tuple(writes))
            for r in creads:
                self.mfma_c[r] = (self.pos, kind[1])
        else:
            for r in writes:
                self.w[r] = (self.pos, kind, op)
            if is_vmem and "store" in op and ("x4" in op or "x3" in op):
                data = R(0) if op.startswith("buffer_") else R(1)
                for r in data: self.st[r] = self.pos
        self.pos += 1
    def _dist(self, r, table):
        p = self.w.get(r)
        if not p: return 0
        req = table.get(p[1], 0)
        have = self.pos - p[0] - 1
        return max(0, req - have)
    def label(self, name):
        self.lines.append(name + ":")
    def newlabel(self, base="L"):
        self._lbl += 1
        return "%s_%d" % (base, self._lbl)
    def comment(self, s):
        self.lines.append("    ; " + s)
    def text(self):
        return "\n".join(self.lines) + "\n"

def kernel_header(name):
    return (".globl %s\n.p2align 8\n.type %s,@function\n%s:\n" % (name, name, name))

def kernel_desc(name, vgpr, sgpr=102, accum=None, wg_y=False):
    if accum is None:
        accum = ((vgpr + 3) // 4) * 4
        accum = min(accum, 256)
    s = ".p2align 6\n.amdhsa_kernel %s\n" % name
    s += "  .amdhsa_next_free_vgpr %d\n" % vgpr
    s += "  .amdhsa_next_free_sgpr %d\n" % sgpr
    s += "  .amdhsa_accum_offset %d\n" % accum
    s += "  .amdhsa_group_segment_fixed_size 0\n"
    s += "  .amdhsa_kernarg_size 112\n"
    s += "  .amdhsa_user_sgpr_count 2\n"
    s += "  .amdhsa_user_sgpr_kernarg_segment_ptr 1\n"
    s += "  .amdhsa_system_sgpr_workgroup_id_x 1\n"
    if wg_y:
        s += "  .amdhsa_system_sgpr_workgroup_id_y 1\n"
    s += ".end_amdhsa_kernel\n"
    return s

def vr(a, n):
    return "v[%d:%d]" % (a, a + n - 1) if n > 1 else "v%d" % a
def sr(a, n):
    return "s[%d:%d]" % (a, a + n - 1) if n > 1 else "s%d" % a
```

```python
import sys, struct, math
from asmlib import *

S, D, F, FH = 2048, 448, 1792, 896
Z1F = 0x0000000
Z2F = 0x0400000
PF  = 0x0800000
UR  = 0x0C00000
YT  = 0x0E00000
STATS = 0x1000000
XST = 0x1080000
WS_SIZE = 0x1100000

def f32(x):
    return "0x%08x" % struct.unpack("<I", struct.pack("<f", x))[0]

class VM:
    def __init__(self, a):
        self.a = a
        self.ops = []
    def issue(self, tag):
        self.ops.append(tag)
    def wait(self, tag):
        idx = max(i for i, t in enumerate(self.ops) if t == tag)
        n = len(self.ops) - 1 - idx
        assert n <= 63
        self.a("s_waitcnt vmcnt(%d)" % n)

DIAG = False
TSB = 0x1090000
def stamp(a, i):
    if DIAG:
        a(f"s_memrealtime s[{70+2*i}:{71+2*i}]")
        if i == 0: a("s_memtime s[86:87]")
        if i == 7: a("s_memtime s[88:89]")
def stamp_out(a, kidx, n, srdreg=20, wavereg=24):
    if not DIAG: return
    a("s_waitcnt lgkmcnt(0)\ns_mov_b64 exec, -1")
    a(f"s_lshl_b32 s68, s2, 3\ns_add_u32 s68, s68, s{wavereg}\ns_lshl_b32 s68, s68, 6\ns_add_u32 s68, s68, {TSB + kidx*0x20000}")
    a("v_mov_b32 v1, 0")
    for i in range(n):
        a(f"v_mov_b32 v2, s{70+2*i}")
        a(f"buffer_store_dword v2, v1, s[{srdreg}:{srdreg+3}], s68 offen offset:{4*i}")

def srd(a, dst, ptr, size):
    a(f"""
    s_mov_b32 s{dst}, s{ptr}
    s_and_b32 s{dst+1}, s{ptr+1}, 0xffff
    s_mov_b32 s{dst+2}, {size}
    s_mov_b32 s{dst+3}, 0x20000
    """)

def rbf16(a, dst, src):
    a(f"v_cvt_pk_bf16_f32 v{dst}, v{src}, v{src}")
    a(f"v_and_b32 v{dst}, 0xffff0000, v{dst}")

def halfsum(a, v, t):
    a(f"v_mov_b32 v{t}, v{v}")
    a(f"v_permlane32_swap_b32 v{v}, v{t}")
    a(f"v_add_f32 v{v}, v{v}, v{t}")

def ln_stats(a, vsum, vsq, n, vm, vr_, t):
    a(f"v_mul_f32 v{vsum}, {f32(1.0/n)}, v{vsum}")
    a(f"v_mul_f32 v{vsq}, {f32(1.0/n)}, v{vsq}")
    a(f"v_fma_f32 v{t}, -v{vsum}, v{vsum}, v{vsq}")
    a(f"v_max_f32 v{t}, 0, v{t}")
    rbf16(a, vm, vsum)
    rbf16(a, t, t)
    a(f"v_add_f32 v{t}, {f32(1e-5)}, v{t}")
    rbf16(a, t, t)
    a(f"v_sqrt_f32 v{t}, v{t}")
    rbf16(a, t, t)
    a(f"v_rcp_f32 v{vr_}, v{t}")

def gen_k1(name):
    a = Asm()
    XI = 0
    WR = 114688
    NSLOT = 5
    CS = WR + NSLOT * 8192
    a(f"""
    s_cmp_ge_u32 s2, 256
    s_cbranch_scc1 {name}_end
    s_cmp_ge_u32 s2, 224
    s_cbranch_scc1 {name}_side
    s_load_dwordx2 s[4:5], s[0:1], 0
    s_load_dwordx2 s[6:7], s[0:1], 56
    s_load_dwordx4 s[8:11], s[0:1], 96
    s_memrealtime s[60:61]
    v_lshrrev_b32 v1, 6, v0
    v_readfirstlane_b32 s24, v1
    v_and_b32 v1, 63, v0
    s_and_b32 s28, s2, 7
    s_lshr_b32 s29, s2, 3
    s_mul_i32 s30, s29, 37
    s_lshr_b32 s30, s30, 8
    s_mul_i32 s31, s30, 7
    s_sub_u32 s31, s29, s31
    s_lshr_b32 s25, s28, 1
    s_lshl_b32 s25, s25, 2
    s_add_u32 s25, s25, s30
    s_and_b32 s26, s28, 1
    s_mul_i32 s26, s26, 7
    s_add_u32 s26, s26, s31
    s_lshl_b32 s27, s30, 1
    s_add_u32 s27, s27, s31
    """)
    for i in range(7):
        a(f"""
        s_add_u32 s32, s27, {i}
        s_sub_u32 s33, s32, 7
        s_cmp_ge_u32 s32, 7
        s_cselect_b32 s32, s33, s32
        s_sub_u32 s33, s32, 7
        s_cmp_ge_u32 s32, 7
        s_cselect_b32 s32, s33, s32
        s_lshl_b32 s{40+i}, s32, 7
        """)
    a(f"""
    v_lshrrev_b32 v11, 3, v1
    v_and_b32 v12, 7, v1
    v_lshrrev_b32 v13, 4, v1
    v_mul_u32_u24 v14, 896, v11
    v_xor_b32 v15, v12, v13
    v_lshl_add_u32 v2, v15, 4, v14
    v_xor_b32 v15, 4, v15
    v_lshl_add_u32 v3, v15, 4, v14
    v_mul_u32_u24 v14, 3584, v11
    v_and_b32 v15, 1, v13
    v_lshlrev_b32 v15, 2, v15
    v_xor_b32 v15, v12, v15
    v_lshl_add_u32 v4, v15, 4, v14
    s_lshl_b32 s34, s25, 2
    s_add_u32 s34, s34, s24
    s_mul_i32 s35, s34, {32*896}
    s_mul_i32 s36, s24, {16*3584}
    s_lshl_b32 s37, s26, 7
    s_add_u32 s38, s36, s37
    s_add_u32 s37, s38, {FH*2}
    s_lshl_b32 s39, s24, 12
    s_lshl_b32 s47, s24, 11
    s_add_u32 s47, s47, {WR}
    s_waitcnt lgkmcnt(0)
    """)
    stamp(a, 0)
    srd(a, 12, 4, S * D * 2)
    srd(a, 16, 6, D * F * 2)
    srd(a, 20, 10, WS_SIZE)
    lbl = name + "_nononce"
    a(f"""
    s_or_b32 s32, s26, s24
    s_cmp_lg_u32 s32, 0
    s_cbranch_scc1 {lbl}
    s_or_b32 s61, s61, 0x80000000
    v_mov_b32 v12, s60
    v_mov_b32 v13, s61
    s_lshl_b32 s32, s25, 3
    v_mov_b32 v14, s32
    global_store_dwordx2 v14, v[12:13], s[8:9] sc0 sc1
    {lbl}:
    """)
    vm = VM(a)
    def dma_x(i):
        for i4 in range(4):
            a(f"s_add_u32 s32, s35, s{40+i}")
            if i4: a(f"s_add_u32 s32, s32, {i4*8*896}")
            a(f"s_add_u32 m0, s39, {XI + i*16384 + i4*1024}")
            a(f"buffer_load_dwordx4 v{2 + (i4 & 1)}, s[12:15], s32 offen lds")
            vm.issue(("x", i))
    def dma_w(st):
        base = 37 if st < 7 else 38
        a(f"s_mul_i32 s33, s{40 + st % 7}, 1792")
        a(f"s_add_u32 s33, s33, s{base}")
        for i2 in range(2):
            if i2: a(f"s_add_u32 s33, s33, {8*3584}")
            a(f"s_add_u32 m0, s47, {(st % NSLOT)*8192 + i2*1024}")
            a(f"buffer_load_dwordx4 v4, s[16:19], s33 offen lds")
            vm.issue(("w", st))
    for i in range(7):
        dma_x(i)
        if i < NSLOT: dma_w(i)
    a(f"""
    v_and_b32 v11, 31, v1
    v_lshrrev_b32 v12, 5, v1
    v_bfe_u32 v13, v1, 1, 3
    v_xor_b32 v13, v13, v12
    v_lshlrev_b32 v14, 7, v11
    v_add_u32 v14, s39, v14
    v_lshl_add_u32 v5, v13, 4, v14
    v_xor_b32 v6, 32, v5
    v_xor_b32 v7, 64, v5
    v_xor_b32 v8, 96, v5
    v_add_u32 v232, 0x10000, v5
    v_add_u32 v233, 0x10000, v6
    v_add_u32 v234, 0x10000, v7
    v_add_u32 v235, 0x10000, v8
    v_bfe_u32 v13, v1, 2, 2
    v_lshl_add_u32 v14, v12, 3, v13
    v_lshlrev_b32 v14, 7, v14
    v_bfe_u32 v15, v1, 4, 1
    v_lshl_add_u32 v14, v15, 5, v14
    v_and_b32 v15, 3, v1
    v_lshl_add_u32 v14, v15, 3, v14
    v_bfe_u32 v15, v1, 3, 1
    v_lshl_add_u32 v14, v15, 6, v14
    v_add_u32 v9, {WR}, v14
    v_xor_b32 v10, 64, v9
    v_and_b32 v13, 127, v0
    v_lshlrev_b32 v13, 2, v13
    v_mov_b32 v14, 0
    ds_write_b32 v13, v14 offset:{CS & 0xffff if False else 0}
    """.replace(f"ds_write_b32 v13, v14 offset:0", f"v_add_u32 v13, {CS}, v13\nds_write_b32 v13, v14"))
    for r in list(range(16, 80)) + list(range(116, 124)):
        a(f"v_mov_b32 v{r}, 0")
    a("s_mov_b32 s48, 0x3f803f80")
    ACC = [16, 48]
    def fr(k): return 80 + 12 * (k % 3)
    def reads(k):
        st, ks = k >> 2, k & 3
        xs = st % 7
        b = fr(k)
        if xs < 4:
            a(f"ds_read_b128 {vr(b,4)}, v{5+ks} offset:{xs*16384}")
        else:
            a(f"ds_read_b128 {vr(b,4)}, v{232+ks} offset:{(xs-4)*16384}")
        for sub in range(2):
            for h in range(2):
                a(f"ds_read_b64_tr_b16 {vr(b+4+4*sub+2*h,2)}, v{9+sub} offset:{(st % NSLOT)*8192 + ks*2048 + h*512}")
    def stage_sync(st):
        if st < 7:
            last = max(i for i, t in enumerate(vm.ops) if t in (("x", st), ("w", st)))
            n = len(vm.ops) - 1 - last
            a(f"s_waitcnt vmcnt({n})")
        else:
            vm.wait(("w", st))
        a("s_barrier")
        nx = st - 2 + NSLOT
        if st >= 2 and nx < 14:
            dma_w(nx)
        if st == 5:
            a(f"s_lshl_b32 s32, s25, 3\nv_mov_b32 v11, s32")
            a(f"global_load_dwordx2 v[122:123], v11, s[8:9] sc0 sc1")
            vm.issue("nonce")
    def compute(k):
        p = k // 28
        ks = k & 3
        b = fr(k)
        for sub in range(2):
            a(f"v_mfma_f32_32x32x16_bf16 {vr(ACC[p]+16*sub,16)}, {vr(b+4+4*sub,4)}, {vr(b,4)}, {vr(ACC[p]+16*sub,16)}")
            if p == 0:
                for e in (2*sub, 2*sub+1):
                    a(f"v_dot2c_f32_bf16 v{116+(e&1)}, s48, v{b+e}")
                    a(f"v_dot2c_f32_bf16 v{118+(e&1)}, v{b+e}, v{b+e}")
        l2 = a.newlabel(name + "_cs")
        a(f"s_cmp_lg_u32 s24, {ks}\ns_cbranch_scc1 {l2}")
        for e in range(4):
            for sub in range(2):
                a(f"v_dot2c_f32_bf16 v{120+sub}, s48, v{b+4+4*sub+e}")
        a(f"{l2}:")
    def cs_exchange(p, extra):
        a(f"""
        v_and_b32 v11, 31, v1
        v_lshlrev_b32 v11, 2, v11
        v_add_u32 v11, {CS + p*256}, v11
        s_nop 2
        ds_add_f32 v11, v120
        ds_add_f32 v11, v121 offset:128
        v_lshrrev_b32 v12, 5, v1
        v_lshlrev_b32 v12, 4, v12
        v_add_u32 v12, {CS + p*256}, v12
        """)
        extra()
        a("s_waitcnt lgkmcnt(0)\ns_barrier")
        for sub in range(2):
            for g in range(4):
                a(f"ds_read_b128 {vr(124+16*sub+4*g,4)}, v12 offset:{sub*128+g*32}")
        a("v_mov_b32 v120, 0\nv_mov_b32 v121, 0")
    c0 = -2.0 * math.sqrt(2.0 / math.pi) * math.log2(math.e)
    c1 = c0 * 0.044715
    VR, VNMR, VC0, VC1, VONE = 172, 174, 176, 178, 180
    VMX = 182
    def gelu_pack(p, dst):
        T = 184
        G = 4
        for g0 in range(0, 16, G):
            prs = range(g0, g0 + G)
            z = {q: ACC[p] + 2*q for q in prs}
            t = {q: T + 2*(q - g0) for q in prs}
            for q in prs: a(f"v_pk_mul_f32 {vr(z[q],2)}, {vr(z[q],2)}, {vr(VR,2)} op_sel_hi:[1,0]")
            for q in prs: a(f"v_pk_fma_f32 {vr(z[q],2)}, {vr(124+2*q,2)}, {vr(VNMR,2)}, {vr(z[q],2)} op_sel_hi:[1,0,1]")
            for q in prs: a(f"v_pk_mul_f32 {vr(t[q],2)}, {vr(z[q],2)}, {vr(z[q],2)}")
            for q in prs: a(f"v_pk_fma_f32 {vr(t[q],2)}, {vr(t[q],2)}, {vr(VC1,2)}, {vr(VC0,2)} op_sel_hi:[1,0,0]")
            for q in prs: a(f"v_pk_mul_f32 {vr(t[q],2)}, {vr(t[q],2)}, {vr(z[q],2)}")
            for q in prs:
                a(f"v_exp_f32 v{t[q]}, v{t[q]}")
                a(f"v_exp_f32 v{t[q]+1}, v{t[q]+1}")
            for q in prs: a(f"v_pk_add_f32 {vr(t[q],2)}, {vr(t[q],2)}, {vr(VONE,2)} op_sel_hi:[1,0]")
            for q in prs:
                a(f"v_rcp_f32 v{t[q]}, v{t[q]}")
                a(f"v_rcp_f32 v{t[q]+1}, v{t[q]+1}")
            for q in prs: a(f"v_pk_mul_f32 {vr(z[q],2)}, {vr(z[q],2)}, {vr(t[q],2)}")
            for q in prs: a(f"v_cvt_pk_bf16_f32 v{dst+q}, v{z[q]}, v{z[q]+1}")
    stage_sync(0)
    stamp(a, 1)
    reads(0); reads(1)
    for k in range(56):
        if k + 2 < 56:
            if (k + 2) % 4 == 0: stage_sync((k + 2) >> 2)
            reads(k + 2)
            a("s_waitcnt lgkmcnt(10)")
        elif k + 1 < 56:
            a("s_waitcnt lgkmcnt(5)")
        else:
            a("s_waitcnt lgkmcnt(0)")
        compute(k)
        if k == 27:
            def extra():
                a("v_add_f32 v116, v116, v117\nv_add_f32 v118, v118, v119")
                halfsum(a, 116, 13); halfsum(a, 118, 14)
                ln_stats(a, 116, 118, D, VMX, VR, 13)
                a(f"v_mul_f32 v{VNMR}, v{VMX}, v{VR}")
                a(f"v_sub_f32 v{VNMR}, 0, v{VNMR}")
                a(f"v_mov_b32 v{VC0}, {f32(c0)}\nv_mov_b32 v{VC1}, {f32(c1)}\nv_mov_b32 v{VONE}, 1.0")
            stamp(a, 2)
            cs_exchange(0, extra)
            a("s_waitcnt lgkmcnt(0)")
            gelu_pack(0, 156)
            a("v_mov_b32 v116, 0\nv_mov_b32 v117, 0\nv_mov_b32 v118, 0\nv_mov_b32 v119, 0")
            for q in range(16):
                a(f"v_dot2c_f32_bf16 v{116+(q&1)}, s48, v{156+q}")
                a(f"v_dot2c_f32_bf16 v{118+(q&1)}, v{156+q}, v{156+q}")
            a("v_add_f32 v192, v116, v117\nv_add_f32 v194, v118, v119")
            halfsum(a, 192, 13); halfsum(a, 194, 14)
            vm.wait("nonce")
            lr, lo = name + "_nretry", name + "_nok"
            a(f"""
            s_mov_b32 s50, 0
            {lr}:
            v_readfirstlane_b32 s51, v123
            s_cmp_lg_u32 s51, 0
            s_cbranch_scc1 {lo}
            s_add_u32 s50, s50, 1
            s_cmp_gt_u32 s50, 0x100000
            s_cbranch_scc1 {lo}
            s_sleep 1
            s_lshl_b32 s32, s25, 3
            v_mov_b32 v11, s32
            global_load_dwordx2 v[122:123], v11, s[8:9] sc0 sc1
            s_waitcnt vmcnt(0)
            s_branch {lr}
            {lo}:
            v_mov_b32 v193, v122
            v_mov_b32 v195, v123
            s_mul_i32 s52, s34, {14*512}
            s_add_u32 s52, s52, {STATS}
            s_lshl_b32 s32, s26, 9
            s_add_u32 s32, s32, s52
            v_and_b32 v11, 31, v1
            v_lshlrev_b32 v11, 4, v11
            buffer_store_dwordx4 v[192:195], v11, s[20:23], s32 offen sc0 sc1
            """)
            vm.issue("pub")
            stamp(a, 3)
    GR = 196
    def gran_loads():
        for i in range(7):
            a(f"buffer_load_dwordx4 {vr(GR+4*i,4)}, v15, s[20:23], s52 offen offset:{i*512} sc0 sc1")
    def extra2():
        a(f"""
        v_and_b32 v15, 31, v1
        v_lshlrev_b32 v15, 4, v15
        v_lshrrev_b32 v14, 5, v1
        v_mul_u32_u24 v14, 3584, v14
        v_add_u32 v15, v15, v14
        """)
        gran_loads()
    stamp(a, 4)
    cs_exchange(1, extra2)
    a("s_waitcnt lgkmcnt(0)")
    gelu_pack(1, 80)
    a(f"""
    v_lshlrev_b32 v11, 4, v1
    s_lshl_b32 s32, s26, 7
    s_add_u32 s32, s32, s34
    s_lshl_b32 s32, s32, 11
    s_add_u32 s33, s32, {64*2048}
    """)
    for sub in range(2):
        for h in range(2):
            a(f"buffer_store_dwordx4 {vr(80+8*sub+4*h,4)}, v11, s[20:23], s{32+sub} offen offset:{h*1024}")
    stamp(a, 5)
    lr, lo = name + "_gretry", name + "_gok"
    a(f"s_mov_b32 s50, 0\ns_waitcnt vmcnt(4)\n{lr}:")
    a(f"v_xor_b32 v12, v{GR+1}, v122\nv_xor_b32 v13, v{GR+3}, v123\nv_or_b32 v12, v12, v13")
    for i in range(1, 7):
        a(f"v_xor_b32 v13, v{GR+4*i+1}, v122\nv_xor_b32 v14, v{GR+4*i+3}, v123\nv_or3_b32 v12, v12, v13, v14")
    a(f"""
    v_cmp_ne_u32 vcc, 0, v12
    s_cbranch_vccz {lo}
    s_add_u32 s50, s50, 1
    s_cmp_gt_u32 s50, 0x100000
    s_cbranch_scc1 {lo}
    s_sleep 1
    """)
    gran_loads()
    a(f"s_waitcnt vmcnt(0)\ns_branch {lr}\n{lo}:")
    for i in range(1, 7):
        a(f"v_add_f32 v{GR}, v{GR}, v{GR+4*i}\nv_add_f32 v{GR+2}, v{GR+2}, v{GR+4*i+2}")
    halfsum(a, GR, 13); halfsum(a, GR + 2, 14)
    stamp(a, 6)
    VM2, VR2 = 224, 226
    ln_stats(a, GR, GR + 2, FH, VM2, VR2, 13)
    a(f"v_mul_f32 v{VM2}, v{VM2}, v{VR2}\nv_sub_f32 v{VM2}, 0, v{VM2}")
    a(f"""
    v_and_b32 v11, 31, v1
    v_lshlrev_b32 v12, 7, v11
    v_add_u32 v12, s39, v12
    v_and_b32 v13, 1, v1
    v_lshrrev_b32 v14, 5, v1
    v_xor_b32 v13, v13, v14
    v_bfe_u32 v14, v1, 1, 1
    v_lshl_or_b32 v13, v14, 3, v13
    v_bfe_u32 v14, v1, 3, 1
    v_lshl_or_b32 v13, v14, 2, v13
    v_bfe_u32 v14, v1, 2, 1
    v_lshl_or_b32 v13, v14, 1, v13
    v_lshl_add_u32 v228, v13, 3, v12
    v_lshrrev_b32 v11, 5, v1
    v_bfe_u32 v12, v1, 2, 2
    v_lshl_add_u32 v12, v11, 3, v12
    v_lshlrev_b32 v12, 7, v12
    v_add_u32 v12, s39, v12
    v_and_b32 v13, 3, v1
    v_bfe_u32 v14, v1, 4, 1
    v_xor_b32 v14, v14, v11
    v_lshl_or_b32 v13, v14, 2, v13
    v_bfe_u32 v14, v1, 2, 1
    v_xor_b32 v13, v13, v14
    v_bfe_u32 v14, v1, 3, 1
    v_lshl_or_b32 v13, v14, 3, v13
    v_lshl_add_u32 v229, v13, 3, v12
    """)
    for q in range(16):
        t = 16 + 2 * q
        a(f"v_lshlrev_b32 v{t}, 16, v{156+q}\nv_and_b32 v{t+1}, 0xffff0000, v{156+q}")
    for q in range(16):
        t = 16 + 2 * q
        a(f"v_pk_fma_f32 {vr(t,2)}, {vr(t,2)}, {vr(VR2,2)}, {vr(VM2,2)} op_sel_hi:[1,0,0]")
    for q in range(16):
        t = 16 + 2 * q
        a(f"v_cvt_pk_bf16_f32 v{156+q}, v{t}, v{t+1}")
    for sub in range(2):
        for g in range(4):
            a(f"v_xor_b32 v{48+4*sub+g}, {(8*sub+2*g) << 3}, v228")
    for sub in range(2):
        for g in range(4):
            a(f"ds_write_b64 v{48+4*sub+g}, {vr(156+8*sub+2*g,2)}")
    for sub in range(2):
        for h in range(2):
            a(f"v_xor_b32 v{56+2*sub+h}, {(8*sub+2*h) << 3}, v229")
    a("s_waitcnt lgkmcnt(0)")
    for sub in range(2):
        for ks2 in range(2):
            for h in range(2):
                a(f"ds_read_b64_tr_b16 {vr(96+8*sub+4*ks2+2*h,2)}, v{56+2*sub+h} offset:{(16*ks2+4*h)*128}")
    a(f"""
    v_lshlrev_b32 v11, 4, v1
    s_lshl_b32 s32, s26, 8
    s_lshl_b32 s33, s34, 1
    s_add_u32 s32, s32, s33
    s_lshl_b32 s32, s32, 10
    s_add_u32 s32, s32, {Z2F}
    s_add_u32 s33, s32, {128*1024}
    s_waitcnt lgkmcnt(0)
    """)
    for sub in range(2):
        for ks2 in range(2):
            a(f"buffer_store_dwordx4 {vr(96+8*sub+4*ks2,4)}, v11, s[20:23], s{32+sub} offen offset:{ks2*1024}")
    if DIAG:
        a("s_waitcnt vmcnt(0)")
        stamp(a, 7)
        a("v_mov_b32 v236, v1")
        stamp_out(a, 0, 10)
        a("v_mov_b32 v1, v236")
    a(f"""
    s_cmp_lg_u32 s26, 0
    s_cbranch_scc1 {name}_end
    v_and_b32 v11, 31, v1
    v_lshlrev_b32 v11, 3, v11
    s_lshl_b32 s32, s34, 8
    s_add_u32 s32, s32, {XST}
    v_mov_b32 v{VMX+1}, v{VR}
    buffer_store_dwordx2 {vr(VMX,2)}, v11, s[20:23], s32 offen
    s_endpgm
    """)
    a(f"{name}_side:")
    a(f"""
    s_load_dwordx4 s[4:7], s[0:1], 8
    s_load_dwordx2 s[8:9], s[0:1], 24
    s_load_dwordx2 s[10:11], s[0:1], 104
    v_lshrrev_b32 v1, 6, v0
    v_readfirstlane_b32 s24, v1
    v_and_b32 v1, 63, v0
    s_sub_u32 s25, s2, 224
    s_lshl_b32 s25, s25, 2
    s_add_u32 s25, s25, s24
    s_lshl_b32 s26, s25, 4
    s_mul_i32 s27, s26, 896
    v_lshlrev_b32 v2, 4, v1
    v_add_u32 v2, s27, v2
    v_add_u32 v3, {(-3*896) & 0xffffffff}, v2
    v_add_u32 v4, {(-2*896) & 0xffffffff}, v2
    v_add_u32 v5, {(-1*896) & 0xffffffff}, v2
    v_lshlrev_b32 v6, 6, v1
    v_cmp_gt_u32 vcc, 56, v1
    s_and_b64 exec, exec, vcc
    s_waitcnt lgkmcnt(0)
    """)
    for i in range(8): stamp(a, i)
    srd(a, 12, 4, S * D * 2)
    srd(a, 16, 6, S * D * 2)
    srd(a, 28, 8, D * 4 * 2)
    srd(a, 20, 10, WS_SIZE)
    KR, VRW, WRAW, WT, KW, OUT, TMP = 8, 84, 148, 164, 196, 148, 228
    for i in range(4):
        a(f"buffer_load_dwordx4 {vr(WRAW+4*i,4)}, v6, s[28:31], 0 offen offset:{16*i}")
    for r in range(3):
        a(f"buffer_load_dwordx4 {vr(KR+4*r,4)}, v{3+r}, s[12:15], 0 offen")
    for r in range(16):
        a(f"s_mov_b32 s32, {r*896}")
        a(f"buffer_load_dwordx4 {vr(KR+4*(r+3),4)}, v2, s[12:15], s32 offen")
        a(f"buffer_load_dwordx4 {vr(VRW+4*r,4)}, v2, s[16:19], s32 offen")
    a("s_waitcnt vmcnt(35)")
    for c in range(8):
        a(f"v_lshlrev_b32 v{WT+0*8+c}, 16, v{WRAW+2*c}")
        a(f"v_and_b32 v{WT+1*8+c}, 0xffff0000, v{WRAW+2*c}")
        a(f"v_lshlrev_b32 v{WT+2*8+c}, 16, v{WRAW+2*c+1}")
        a(f"v_and_b32 v{WT+3*8+c}, 0xffff0000, v{WRAW+2*c+1}")
    def unpack(dst, src):
        for e in range(4):
            a(f"v_lshlrev_b32 v{dst+2*e}, 16, v{src+e}\nv_and_b32 v{dst+2*e+1}, 0xffff0000, v{src+e}")
    a("s_waitcnt vmcnt(32)")
    stamp(a, 1)
    for r in range(3):
        unpack(KW + 8 * (r % 4), KR + 4 * r)
    outreg = lambda c: (148 + 4*c) if c < 4 else (240 + 4*(c-4))
    a(f"v_lshlrev_b32 v7, 15, v1")
    for r in range(16):
        a(f"s_waitcnt vmcnt({30 - 2*r + (8 if r >= 8 else 0)})")
        unpack(KW + 8 * ((r + 3) % 4), KR + 4 * (r + 3))
        acc = TMP if (r & 1) == 0 else KR + 4 * (r & ~1)
        for e in range(4):
            a(f"v_pk_mul_f32 {vr(acc+2*e,2)}, {vr(KW+8*((r+0)%4)+2*e,2)}, {vr(WT+3*8+2*e,2)}")
        for j in (2, 1, 0):
            for e in range(4):
                a(f"v_pk_fma_f32 {vr(acc+2*e,2)}, {vr(KW+8*((r+3-j)%4)+2*e,2)}, {vr(WT+j*8+2*e,2)}, {vr(acc+2*e,2)}")
        vt = KW + 8 * (r % 4)
        unpack(vt, VRW + 4 * r)
        for e in range(4):
            a(f"v_pk_mul_f32 {vr(acc+2*e,2)}, {vr(acc+2*e,2)}, {vr(vt+2*e,2)}")
        if r & 1:
            q = 3 - ((r & 7) >> 1)
            for c in range(8):
                a(f"v_cvt_pk_bf16_f32 v{outreg(c)+q}, v{acc+c}, v{TMP+c}")
        if (r & 7) == 7:
            a(f"s_add_u32 s32, s26, {r-7}\ns_lshl_b32 s32, s32, 1\ns_sub_u32 s32, {UR + 4080}, s32")
            for c in range(8):
                a(f"buffer_store_dwordx4 {vr(outreg(c),4)}, v7, s[20:23], s32 offen")
                if c < 7: a("s_add_u32 s32, s32, 4096")
    if DIAG:
        stamp(a, 6)
        a("s_waitcnt vmcnt(0)")
        stamp(a, 7)
        stamp_out(a, 0, 10)
    a(f"{name}_end:")
    a("s_endpgm")
    return a

def gen_k2(name):
    a = Asm()
    NSLOT = 5
    DEPTH = 4
    WR = 0
    CB = NSLOT * 8192
    HSZ = 4 * 4160
    CH = HSZ + 4608
    XCH = CB + 2 * CH
    NBAR = 32
    a(f"""
    s_cmp_ge_u32 s2, 224
    s_cbranch_scc1 {name}_end
    s_load_dwordx4 s[4:7], s[0:1], 64
    s_load_dwordx4 s[8:11], s[0:1], 32
    s_load_dwordx2 s[28:29], s[0:1], 104
    v_lshrrev_b32 v1, 6, v0
    v_readfirstlane_b32 s24, v1
    v_and_b32 v1, 63, v0
    s_cmp_ge_u32 s24, 4
    s_cbranch_scc1 {name}_conv
    s_setprio 1
    s_and_b32 s30, s2, 7
    s_lshr_b32 s31, s2, 3
    s_and_b32 s32, s30, 1
    s_mul_i32 s32, s32, 28
    s_add_u32 s32, s32, s31
    s_lshr_b32 s25, s32, 3
    s_and_b32 s32, s32, 7
    s_lshr_b32 s26, s30, 1
    s_lshl_b32 s26, s26, 3
    s_add_u32 s26, s26, s32
    s_lshl_b32 s27, s25, 2
    s_add_u32 s27, s27, s24
    v_lshrrev_b32 v11, 3, v1
    v_and_b32 v12, 7, v1
    v_lshrrev_b32 v13, 4, v1
    v_lshlrev_b32 v14, 12, v11
    v_xor_b32 v15, v12, v13
    v_lshl_add_u32 v2, v15, 4, v14
    v_xor_b32 v15, 4, v15
    v_lshl_add_u32 v3, v15, 4, v14
    v_add_u32 v3, 0x8000, v3
    v_lshlrev_b32 v4, 4, v1
    s_lshl_b32 s34, s26, 2
    s_add_u32 s34, s34, s24
    s_lshl_b32 s34, s34, 16
    s_lshl_b32 s35, s27, 17
    s_add_u32 s35, s35, {Z2F}
    s_lshl_b32 s36, s24, 11
    s_waitcnt lgkmcnt(0)
    """)
    stamp(a, 0)
    srd(a, 12, 4, S * S * 2)
    srd(a, 16, 6, S * 2)
    srd(a, 20, 28, WS_SIZE)
    vm = VM(a)
    ZB = 64
    def zreg(st, ks): return ZB + 16 * (st % (DEPTH + 1)) + 4 * ks
    def issue(st):
        a(f"s_add_u32 s33, s34, {st*128}")
        for i2 in range(2):
            a(f"s_add_u32 m0, s36, {WR + (st % NSLOT)*8192 + i2*1024}")
            a(f"buffer_load_dwordx4 v{2+i2}, s[12:15], s33 offen lds")
            vm.issue(st)
        a(f"s_add_u32 s33, s35, {st*4096}")
        for ks in range(4):
            a(f"buffer_load_dwordx4 {vr(zreg(st,ks),4)}, v4, s[20:23], s33 offen offset:{ks*1024}")
            vm.issue(st)
    for st in range(DEPTH): issue(st)
    a(f"""
    v_and_b32 v11, 31, v1
    v_lshrrev_b32 v12, 5, v1
    v_bfe_u32 v13, v1, 1, 3
    v_xor_b32 v13, v13, v12
    v_lshlrev_b32 v14, 7, v11
    v_lshl_add_u32 v5, v13, 4, v14
    v_xor_b32 v6, 32, v5
    v_xor_b32 v7, 64, v5
    v_xor_b32 v8, 96, v5
    """)
    for r in range(16, 48): a(f"v_mov_b32 v{r}, 0")
    WF = 160
    Z1R = 192
    for st in range(32):
        vm.wait(st)
        a("s_barrier")
        if st == 0: stamp(a, 1)
        for ks in range(4):
            for ts in range(2):
                a(f"ds_read_b128 {vr(WF+8*ks+4*ts,4)}, v{5+ks} offset:{WR + (st % NSLOT)*8192 + ts*4096}")
        if st + DEPTH < 32:
            issue(st + DEPTH)
        if st == 28:
            a(f"s_lshl_b32 s33, s27, 6\ns_lshl_b32 s37, s26, 1\ns_add_u32 s33, s33, s37\ns_lshl_b32 s33, s33, 11")
            for i in range(4):
                a(f"buffer_load_dwordx4 {vr(Z1R+4*i,4)}, v4, s[20:23], s33 offen offset:{i*1024}")
                vm.issue("z1")
            a(f"v_and_b32 v11, 31, v1\nv_lshlrev_b32 v11, 1, v11\ns_lshl_b32 s33, s26, 7")
            for ts in range(2):
                a(f"buffer_load_ushort v{208+2*ts}, v11, s[16:19], s33 offen offset:{ts*64}")
                vm.issue("z1")
        for ks in range(4):
            a(f"s_waitcnt lgkmcnt({6-2*ks})")
            for ts in range(2):
                a(f"v_mfma_f32_32x32x16_bf16 {vr(16+16*ts,16)}, {vr(zreg(st,ks),4)}, {vr(WF+8*ks+4*ts,4)}, {vr(16+16*ts,16)}")
    stamp(a, 2)
    a("s_waitcnt vmcnt(0)")
    a("v_lshlrev_b32 v208, 16, v208\nv_lshlrev_b32 v210, 16, v210")
    T = 64
    for ts in range(2):
        for q in range(8):
            a(f"v_lshlrev_b32 v{T+2*q}, 16, v{Z1R+8*ts+q}\nv_and_b32 v{T+2*q+1}, 0xffff0000, v{Z1R+8*ts+q}")
        for q in range(8):
            a(f"v_pk_add_f32 {vr(16+16*ts+2*q,2)}, {vr(16+16*ts+2*q,2)}, {vr(208+2*ts,2)} op_sel_hi:[1,0]")
        for q in range(8):
            a(f"v_pk_mul_f32 {vr(T+2*q,2)}, {vr(T+2*q,2)}, {vr(16+16*ts+2*q,2)}")
        P = 96 + 8 * ts
        for q in range(8):
            a(f"v_cvt_pk_bf16_f32 v{P+q}, v{T+2*q}, v{T+2*q+1}")
        for k2 in range(2):
            a(f"v_permlane32_swap_b32 v{P+4*k2}, v{P+4*k2+2}")
            a(f"v_permlane32_swap_b32 v{P+4*k2+1}, v{P+4*k2+3}")
        a(f"s_lshl_b32 s33, s26, 1\ns_add_u32 s33, s33, {ts}\ns_mul_i32 s33, s33, 56\ns_lshl_b32 s37, s27, 1\ns_add_u32 s33, s33, s37\ns_lshl_b32 s33, s33, 10\ns_add_u32 s33, s33, {PF}")
        for k2 in range(2):
            a(f"buffer_store_dwordx4 {vr(P+4*k2,4)}, v4, s[20:23], s33 offen offset:{k2*1024}")
    if DIAG:
        for i in range(3, 7): stamp(a, i)
        a("s_waitcnt vmcnt(0)")
        stamp(a, 7)
        stamp_out(a, 1, 10)
    a("s_endpgm")
    a(f"{name}_conv:")
    a(f"""
    s_sub_u32 s25, s24, 4
    s_lshr_b32 s26, s25, 1
    s_and_b32 s27, s25, 1
    s_lshl_b32 s30, s2, 1
    s_add_u32 s30, s30, s26
    s_mul_i32 s31, s26, {CH}
    s_add_u32 s31, s31, {CB}
    s_add_u32 s32, s31, {HSZ}
    s_lshl_b32 s33, s30, 12
    s_waitcnt lgkmcnt(0)
    s_add_u32 s8, s8, s33
    s_addc_u32 s9, s9, 0
    """)
    for i in range(8): stamp(a, i)
    srd(a, 12, 8, 4096)
    srd(a, 16, 10, D * 2)
    srd(a, 20, 28, WS_SIZE)
    a(f"""
    v_lshlrev_b32 v2, 4, v1
    s_lshl_b32 s34, s27, 11
    v_add_u32 v3, s34, v2
    v_and_b32 v4, 1, v1
    v_lshlrev_b32 v4, 4, v4
    v_add_u32 v5, {(-32) & 0xffffffff}, v4
    v_add_u32 v6, {(-16) & 0xffffffff}, v4
    """)
    HA = 64
    for it in range(2):
        a(f"buffer_load_dwordx4 {vr(HA+8*it,4)}, v3, s[12:15], 0 offen offset:{it*1024}")
        a(f"buffer_load_dwordx2 {vr(HA+8*it+4,2)}, v3, s[12:15], 0 offen offset:{it*1024+16}")
    a(f"buffer_load_dwordx4 {vr(HA+16,4)}, v5, s[12:15], 0 offen")
    a(f"buffer_load_dwordx2 {vr(HA+20,2)}, v6, s[12:15], 0 offen")
    a(f"s_lshl_b32 s35, s30, 12\ns_add_u32 s35, s35, {UR}\ns_add_u32 s35, s35, s34\ns_add_u32 m0, s32, s34")
    a(f"buffer_load_dwordx4 v2, s[20:23], s35 offen lds")
    a(f"buffer_load_dwordx4 v2, s[20:23], s35 offen offset:1024 lds")
    a(f"s_lshl_b32 s35, s30, 1\nv_mov_b32 v7, s35")
    a(f"buffer_load_ushort v60, v7, s[16:19], 0 offen")
    a(f"v_lshlrev_b32 v8, 3, v1\nv_add_u32 v8, s32, v8\nv_mov_b32 v10, 0\nv_mov_b32 v11, 0\nds_write_b64 v8, v[10:11] offset:4096")
    for r in range(16, 48): a(f"v_mov_b32 v{r}, 0")
    a(f"""
    v_and_b32 v9, 15, v1
    v_lshrrev_b32 v10, 4, v1
    v_add_u32 v11, 1, v9
    v_and_b32 v12, 3, v11
    v_mul_u32_u24 v12, 4160, v12
    v_and_b32 v11, 0x1c, v11
    v_lshl_add_u32 v12, v11, 1, v12
    v_lshl_add_u32 v12, v10, 4, v12
    s_lshl_b32 s35, s27, 8
    s_add_u32 s36, s31, s35
    v_add_u32 v50, s36, v12
    v_lshlrev_b32 v12, 5, v9
    v_lshlrev_b32 v13, 4, v10
    v_sub_u32 v13, v13, v12
    s_add_u32 s36, s32, s35
    s_add_u32 s36, s36, 480
    v_add_u32 v51, s36, v13
    """)
    nb = [0]
    def bar():
        a("s_barrier"); nb[0] += 1
    bar()
    a("s_waitcnt vmcnt(0)")
    a(f"s_add_u32 s36, s31, 32\nv_add_u32 v52, s36, v3\nv_add_u32 v53, s31, v4")
    for it in range(3):
        A = HA + 8 * it
        O = 96
        for e in range(4):
            a(f"v_alignbit_b32 v{O+e}, v{A+e+1}, v{A+e}, 16")
            a(f"v_mov_b32 v{O+4+e}, v{A+e+1}")
            a(f"v_alignbit_b32 v{O+8+e}, v{A+e+2}, v{A+e+1}, 16")
        ad = 52 if it < 2 else 53
        off = it * 1024 if it < 2 else 0
        a(f"ds_write_b128 v{ad}, {vr(A,4)} offset:{off}")
        for c in range(1, 4):
            a(f"ds_write_b128 v{ad}, {vr(O+4*(c-1),4)} offset:{off + c*4160}")
        if it == 1: bar()
    a("s_waitcnt lgkmcnt(0)")
    bar()
    stamp(a, 1)
    FB = [64, 128]
    def loads(r):
        b = FB[r & 1]
        lst = []
        for c in range(8):
            lst.append(f"ds_read_b128 {vr(b+32+4*c,4)}, v51 offset:{512*(7-c) + 64*r}")
            lst.append(f"ds_read_b64 {vr(b+4*c,2)}, v50 offset:{64*(8*c+r)}")
            lst.append(f"ds_read_b64 {vr(b+4*c+2,2)}, v50 offset:{64*(8*c+r)+8}")
        return lst
    for l in loads(0)[:12]: a(l)
    a("s_waitcnt lgkmcnt(0)")
    for l in loads(0)[12:]: a(l)
    a("s_waitcnt lgkmcnt(0)")
    cnt = 0
    PER = 6
    for r in range(4):
        b = FB[r & 1]
        nxt = loads(r + 1) if r < 3 else []
        mm = [(c, e) for c in range(8) for e in range(8 - c)]
        for i, (c, e) in enumerate(mm):
            a(f"v_mfma_f32_16x16x32_bf16 {vr(16+4*(c+e),4)}, {vr(b+4*c,4)}, {vr(b+32+4*e,4)}, {vr(16+4*(c+e),4)}")
            if i < len(nxt): a(nxt[i])
            cnt += 1
            if cnt % PER == 0:
                a("s_waitcnt lgkmcnt(0)")
                bar()
    stamp(a, 2)
    a(f"""
    s_lshl_b32 s35, s25, 12
    s_add_u32 s35, s35, {XCH}
    v_add_u32 v52, s35, v2
    s_xor_b32 s35, s35, 4096
    v_add_u32 v53, s35, v2
    s_cmp_eq_u32 s27, 0
    s_cbranch_scc1 {name}_h0
    s_nop 7
    """)
    for t in range(16):
        a(f"v_mov_b32 v{64+t}, v{16+t}\nv_mov_b32 v{16+t}, v{32+t}\nv_mov_b32 v{32+t}, v{64+t}")
    a(f"{name}_h0:\ns_nop 7")
    for t in range(4):
        a(f"ds_write_b128 v52, {vr(32+4*t,4)} offset:{t*1024}")
    a("s_waitcnt lgkmcnt(0)")
    bar()
    for t in range(4):
        a(f"ds_read_b128 {vr(64+4*t,4)}, v53 offset:{t*1024}")
    a(f"""
    v_lshlrev_b32 v12, 5, v9
    v_lshl_add_u32 v12, v10, 3, v12
    s_lshl_b32 s35, s27, 11
    s_sub_u32 s36, s32, s35
    s_add_u32 s36, s36, {4088 - 3*512}
    v_sub_u32 v13, s36, v12
    """)
    for t in range(4):
        a(f"ds_read_b64 {vr(80+2*t,2)}, v13 offset:{(3-t)*512}")
    while nb[0] < NBAR: bar()
    a(f"v_lshlrev_b32 v60, 16, v60\ns_lshl_b32 s36, s30, 12\ns_add_u32 s36, s36, s35\ns_add_u32 s36, s36, {YT}")
    a("s_waitcnt lgkmcnt(0)")
    for t in range(4):
        Y = 16 + 4 * t
        a(f"v_pk_add_f32 {vr(Y,2)}, {vr(Y,2)}, {vr(64+4*t,2)}\nv_pk_add_f32 {vr(Y+2,2)}, {vr(Y+2,2)}, {vr(66+4*t,2)}")
        U = 96
        a(f"""
        v_and_b32 v{U}, 0xffff0000, v{81+2*t}
        v_lshlrev_b32 v{U+1}, 16, v{81+2*t}
        v_and_b32 v{U+2}, 0xffff0000, v{80+2*t}
        v_lshlrev_b32 v{U+3}, 16, v{80+2*t}
        v_fmac_f32 v{Y}, v{U}, v60
        v_fmac_f32 v{Y+1}, v{U+1}, v60
        v_fmac_f32 v{Y+2}, v{U+2}, v60
        v_fmac_f32 v{Y+3}, v{U+3}, v60
        v_cvt_pk_bf16_f32 v{100+2*t}, v{Y}, v{Y+1}
        v_cvt_pk_bf16_f32 v{101+2*t}, v{Y+2}, v{Y+3}
        buffer_store_dwordx2 {vr(100+2*t,2)}, v12, s[20:23], s36 offen offset:{t*512}
        """)
    if DIAG:
        a("s_waitcnt vmcnt(0)")
        stamp(a, 7)
        stamp_out(a, 1, 10)
    a(f"{name}_end:")
    a("s_endpgm")
    return a, XCH + 4 * 4096

def gen_k3(name):
    a = Asm()
    WSZ = 28672
    YB = 4 * WSZ
    a(f"""
    s_cmp_ge_u32 s2, 224
    s_cbranch_scc1 {name}_end
    s_load_dwordx2 s[4:5], s[0:1], 0
    s_load_dwordx4 s[8:11], s[0:1], 80
    s_load_dwordx2 s[28:29], s[0:1], 104
    v_lshrrev_b32 v1, 6, v0
    v_readfirstlane_b32 s24, v1
    v_and_b32 v1, 63, v0
    s_and_b32 s30, s2, 7
    s_lshr_b32 s31, s2, 3
    s_mul_i32 s32, s31, 37
    s_lshr_b32 s32, s32, 8
    s_mul_i32 s33, s32, 7
    s_sub_u32 s26, s31, s33
    s_lshl_b32 s25, s30, 2
    s_add_u32 s25, s25, s32
    v_lshrrev_b32 v11, 3, v1
    v_and_b32 v12, 7, v1
    v_bfe_u32 v13, v1, 4, 1
    v_mul_u32_u24 v14, 896, v11
    v_lshlrev_b32 v13, 2, v13
    v_xor_b32 v15, v12, v13
    v_lshl_add_u32 v2, v15, 4, v14
    v_lshlrev_b32 v4, 4, v1
    s_mul_i32 s34, s24, {224*896}
    s_lshl_b32 s35, s26, 7
    s_add_u32 s34, s34, s35
    s_mul_i32 s35, s25, {2*56*1024}
    s_mul_i32 s36, s24, {14*1024}
    s_add_u32 s35, s35, s36
    s_add_u32 s35, s35, {PF}
    s_add_u32 s36, s35, {56*1024}
    s_mul_i32 s37, s24, {WSZ}
    s_waitcnt lgkmcnt(0)
    """)
    stamp(a, 0)
    srd(a, 12, 8, FH * D * 2)
    srd(a, 16, 10, S * D * 2)
    srd(a, 20, 28, WS_SIZE)
    srd(a, 40, 4, S * D * 2)
    vm = VM(a)
    PB = 80
    def issue(i):
        for i2 in range(2):
            a(f"s_add_u32 s33, s34, {(16*i+8*i2)*896}")
            a(f"s_add_u32 m0, s37, {i*2048 + i2*1024}")
            a(f"buffer_load_dwordx4 v2, s[12:15], s33 offen lds")
            vm.issue(i)
        for ts in range(2):
            a(f"s_add_u32 s33, s{35+ts}, {i*1024}")
            a(f"buffer_load_dwordx4 {vr(PB+8*i+4*ts,4)}, v4, s[20:23], s33 offen")
            vm.issue(i)
    AHEAD = 5
    for i in range(AHEAD): issue(i)
    a(f"""
    v_lshrrev_b32 v12, 5, v1
    v_bfe_u32 v13, v1, 2, 2
    v_lshl_add_u32 v14, v12, 3, v13
    v_lshlrev_b32 v14, 7, v14
    v_bfe_u32 v15, v1, 4, 1
    v_lshl_add_u32 v14, v15, 5, v14
    v_and_b32 v15, 3, v1
    v_lshl_add_u32 v14, v15, 3, v14
    v_bfe_u32 v15, v1, 3, 1
    v_lshl_add_u32 v14, v15, 6, v14
    v_add_u32 v9, s37, v14
    v_xor_b32 v10, 64, v9
    s_lshr_b32 s38, s24, 1
    s_and_b32 s39, s24, 1
    """)
    for r in range(16, 80): a(f"v_mov_b32 v{r}, 0")
    WF = 192
    def rd(i):
        b = WF + 8 * (i & 1)
        for sub in range(2):
            for h in range(2):
                a(f"ds_read_b64_tr_b16 {vr(b+4*sub+2*h,2)}, v{9+sub} offset:{i*2048 + h*512}")
    XR, ST = 208, 216
    def extras():
        a(f"""
        v_and_b32 v11, 31, v1
        v_mul_u32_u24 v12, 896, v11
        v_lshrrev_b32 v13, 5, v1
        v_lshl_add_u32 v3, v13, 4, v12
        s_lshl_b32 s44, s25, 1
        s_add_u32 s44, s44, s39
        s_mul_i32 s45, s44, {32*896}
        s_lshl_b32 s46, s26, 1
        s_add_u32 s46, s46, s38
        s_lshl_b32 s47, s46, 6
        s_add_u32 s45, s45, s47
        buffer_load_dwordx4 {vr(XR,4)}, v3, s[40:43], s45 offen
        buffer_load_dwordx4 {vr(XR+4,4)}, v3, s[40:43], s45 offen offset:32
        v_lshlrev_b32 v12, 3, v11
        s_lshl_b32 s47, s44, 8
        s_add_u32 s47, s47, {XST}
        buffer_load_dwordx2 {vr(ST,2)}, v12, s[20:23], s47 offen
        v_lshrrev_b32 v12, 2, v1
        v_lshlrev_b32 v12, 12, v12
        v_and_b32 v13, 3, v1
        v_lshl_add_u32 v12, v13, 4, v12
        s_lshl_b32 s47, s46, 17
        s_lshl_b32 s48, s44, 6
        s_add_u32 s47, s47, s48
        s_add_u32 s47, s47, {YT}
        s_lshl_b32 s48, s24, 11
        s_add_u32 s48, s48, {YB}
        s_mov_b32 m0, s48
        buffer_load_dwordx4 v12, s[20:23], s47 offen lds
        s_add_u32 s47, s47, 0x10000
        s_add_u32 m0, s48, 1024
        buffer_load_dwordx4 v12, s[20:23], s47 offen lds
        """)
        for _ in range(5): vm.issue("ex")
    vm.wait(0)
    stamp(a, 1)
    rd(0)
    for i in range(14):
        if i + AHEAD < 14: issue(i + AHEAD)
        if i + AHEAD == 14: extras()
        if i + 1 < 14:
            vm.wait(i + 1)
            rd(i + 1)
            a("s_waitcnt lgkmcnt(4)")
        else:
            a("s_waitcnt lgkmcnt(0)")
        b = WF + 8 * (i & 1)
        for sub in range(2):
            for ts in range(2):
                acc = 16 + 16 * (2 * sub + ts)
                a(f"v_mfma_f32_32x32x16_bf16 {vr(acc,16)}, {vr(b+4*sub,4)}, {vr(PB+8*i+4*ts,4)}, {vr(acc,16)}")
    stamp(a, 2)
    a(f"v_add_u32 v5, s37, v4\ns_lshl_b32 s33, s24, 12\nv_add_u32 v6, s33, v4\nv_add_u32 v7, {2*WSZ}, v6")
    for sb in range(4):
        for g in range(4):
            a(f"ds_write_b128 v5, {vr(16+16*sb+4*g,4)} offset:{sb*4096+g*1024}")
        if sb == 2: a("s_waitcnt lgkmcnt(8)")
    a("s_waitcnt lgkmcnt(0)\ns_barrier")
    for wv in range(4):
        for g in range(4):
            a(f"ds_read_b128 {vr(80+16*wv+4*g,4)}, v{6 + (wv >> 1)} offset:{(wv & 1)*WSZ + g*1024}")
        if wv == 1: a("s_waitcnt lgkmcnt(0)")
    a(f"""
    v_lshrrev_b32 v12, 5, v1
    v_bfe_u32 v13, v1, 2, 2
    v_lshl_add_u32 v14, v12, 2, v13
    v_lshlrev_b32 v14, 6, v14
    v_bfe_u32 v15, v1, 4, 1
    v_lshl_add_u32 v14, v15, 5, v14
    v_and_b32 v15, 3, v1
    v_lshl_add_u32 v14, v15, 3, v14
    v_add_u32 v14, s48, v14
    s_waitcnt vmcnt(0)
    """)
    YR = 192
    for g in range(4):
        a(f"ds_read_b64_tr_b16 {vr(YR+2*g,2)}, v14 offset:{g*512}")
    for k2 in range(2):
        a(f"v_permlane32_swap_b32 v{XR+4*k2}, v{XR+4*k2+2}")
        a(f"v_permlane32_swap_b32 v{XR+4*k2+1}, v{XR+4*k2+3}")
    for q in range(8):
        a(f"v_pk_add_f32 {vr(80+2*q,2)}, {vr(80+2*q,2)}, {vr(96+2*q,2)}")
    a("s_waitcnt lgkmcnt(0)")
    for q in range(8):
        a(f"v_pk_add_f32 {vr(112+2*q,2)}, {vr(112+2*q,2)}, {vr(128+2*q,2)}")
    for q in range(8):
        a(f"v_pk_add_f32 {vr(80+2*q,2)}, {vr(80+2*q,2)}, {vr(112+2*q,2)}")
    O = 80
    X, Y, T = 16, 32, 48
    a(f"v_mov_b32 v218, v{ST+1}\nv_mov_b32 v220, {f32(-math.log2(math.e))}\nv_mov_b32 v222, 1.0")
    for q in range(8):
        a(f"v_lshlrev_b32 v{X+2*q}, 16, v{XR+q}\nv_and_b32 v{X+2*q+1}, 0xffff0000, v{XR+q}")
        a(f"v_lshlrev_b32 v{Y+2*q}, 16, v{YR+q}\nv_and_b32 v{Y+2*q+1}, 0xffff0000, v{YR+q}")
    for q in range(8): a(f"v_pk_mul_f32 {vr(T+2*q,2)}, {vr(O+2*q,2)}, {vr(220,2)} op_sel_hi:[1,0]")
    for e in range(16): a(f"v_exp_f32 v{T+e}, v{T+e}")
    for q in range(8): a(f"v_pk_add_f32 {vr(T+2*q,2)}, {vr(T+2*q,2)}, {vr(222,2)} op_sel_hi:[1,0]")
    for e in range(16): a(f"v_rcp_f32 v{T+e}, v{T+e}")
    for q in range(8): a(f"v_pk_mul_f32 {vr(O+2*q,2)}, {vr(O+2*q,2)}, {vr(T+2*q,2)}")
    for q in range(8): a(f"v_pk_add_f32 {vr(T+2*q,2)}, {vr(X+2*q,2)}, {vr(ST,2)} op_sel_hi:[1,0] neg_lo:[0,1] neg_hi:[0,1]")
    for q in range(8): a(f"v_pk_mul_f32 {vr(T+2*q,2)}, {vr(T+2*q,2)}, {vr(218,2)} op_sel_hi:[1,0]")
    for q in range(8): a(f"v_pk_mul_f32 {vr(T+2*q,2)}, {vr(T+2*q,2)}, {vr(Y+2*q,2)}")
    for q in range(8): a(f"v_pk_fma_f32 {vr(T+2*q,2)}, {vr(T+2*q,2)}, {vr(O+2*q,2)}, {vr(X+2*q,2)}")
    P = 96
    for q in range(8): a(f"v_cvt_pk_bf16_f32 v{P+q}, v{T+2*q}, v{T+2*q+1}")
    for k2 in range(2):
        a(f"v_permlane32_swap_b32 v{P+4*k2}, v{P+4*k2+2}")
        a(f"v_permlane32_swap_b32 v{P+4*k2+1}, v{P+4*k2+3}")
    for k2 in range(2):
        a(f"buffer_store_dwordx4 {vr(P+4*k2,4)}, v3, s[16:19], s45 offen offset:{k2*32}")
    if DIAG:
        for i in range(3, 7): stamp(a, i)
        a("s_waitcnt vmcnt(0)")
        stamp(a, 7)
        stamp_out(a, 2, 10)
    a(f"{name}_end:")
    a("s_endpgm")
    return a, YB + 4 * 2048

HEADER = open("recurrent_scan__ssm_conv_h3__mixer_gmlp__prompt.s.ref").read().split("; Override")[0]

def build(kernels, path):
    out = HEADER
    for (name, a, grid, block, lds, vg) in kernels:
        out += f"; @launch kernel={name} grid=({grid},1,1) block=({block},1,1) lds={lds}\n"
    out += '.amdgcn_target "amdgcn-amd-amdhsa--gfx950"\n.text\n'
    for (name, a, grid, block, lds, vg) in kernels:
        out += kernel_header(name) + a.text()
    out += '.section .rodata,"a"\n'
    for (name, a, grid, block, lds, vg) in kernels:
        out += kernel_desc(name, vg)
    open(path, "w").write(out)

if __name__ == "__main__":
    if "--diag" in sys.argv:
        DIAG = True
        sys.argv.remove("--diag")
    k2, lds2 = gen_k2("k2_kernel")
    k3, lds3 = gen_k3("k3_kernel")
    ks = [("k1_kernel", gen_k1("k1_kernel"), 256, 256, 163840, 256),
          ("k2_kernel", k2, 224, 512, lds2, 224),
          ("k3_kernel", k3, 224, 256, lds3, 224)]
    build(ks, sys.argv[1] if len(sys.argv) > 1 else "out.s")
```

```python
import re

_REG = re.compile(r"\b([vas])(?:(\d+)|\[(\d+):(\d+)\])")

def regs_of(tok):
    out = []
    for m in _REG.finditer(tok):
        k = m.group(1)
        if m.group(2) is not None:
            out.append((k, int(m.group(2))))
        else:
            out += [(k, i) for i in range(int(m.group(3)), int(m.group(4)) + 1)]
    t = tok.strip()
    if t in ("vcc", "vcc_lo", "vcc_hi"):
        out.append(("s", "vcc"))
    if t in ("m0",):
        out.append(("s", "m0"))
    if t in ("exec",):
        out.append(("s", "exec"))
    return out

TRANS = ("v_exp_f32", "v_log_f32", "v_rcp_f32", "v_rsq_f32", "v_sqrt_f32", "v_sin_f32", "v_cos_f32")

def split_ops(rest):
    ops, cur, d = [], "", 0
    for ch in rest:
        if ch == "[": d += 1
        if ch == "]": d -= 1
        if ch == "," and d == 0:
            ops.append(cur.strip()); cur = ""
        else:
            cur += ch
    if cur.strip(): ops.append(cur.strip())
    return ops

class Asm:
    def __init__(self, autonop=True):
        self.lines = []
        self._lbl = 0
        self.autonop = autonop
        self.pos = 0
        self.w = {}
        self.mfma_c = {}
        self.st = {}
        self.nops = 0
        self.fwd = {}
        self.seen = set()
    def __call__(self, s):
        for l in s.strip("\n").split("\n"):
            l = l.strip()
            if not l: continue
            if l.startswith(";"):
                self.lines.append("    " + l); continue
            if l.endswith(":"):
                self.label(l[:-1]); continue
            self.inst(l)
    def inst(self, l):
        code = l.split(";")[0].strip()
        parts = code.split(None, 1)
        op = parts[0]
        rest = parts[1] if len(parts) > 1 else ""
        ops = split_ops(rest)
        if ops:
            last = ops[-1].split()
            mods = last[1:]
            ops[-1] = last[0] if last else ""
        else:
            mods = []
        need = 0
        reads, writes = [], []
        kind = None
        is_valu = op.startswith("v_") and not op.startswith("v_mfma")
        is_mfma = op.startswith("v_mfma")
        is_vmem = op.startswith("buffer_") or op.startswith("global_")
        is_ds = op.startswith("ds_")
        R = lambda i: regs_of(ops[i]) if i < len(ops) else []
        if is_mfma:
            writes = R(0); reads = R(1) + R(2); creads = R(3)
            passes = 8 if "32x32" in op else 4
            kind = ("mfma", passes)
            for r in reads:
                need = max(need, self._dist(r, {"valu": 2, "trans": 2, "dot": 3, "mfma8": 12, "mfma4": 8}))
            same = (R(0) == creads)
            for r in creads:
                p = self.w.get(r)
                if p and p[1].startswith("mfma"):
                    if not (same and p[2] == tuple(creads) and p[1] == "mfma%d" % passes):
                        need = max(need, self._dist(r, {"mfma8": 10, "mfma4": 6}))
                else:
                    need = max(need, self._dist(r, {"valu": 2, "trans": 2, "dot": 3}))
            need = max(need, self._dist(("s", "exec"), {"valu": 4}))
        elif is_valu:
            if op.startswith("v_cmp"):
                writes = R(0); reads = sum((R(i) for i in range(1, len(ops))), [])
            elif op.startswith("v_permlane") and "swap" in op:
                writes = R(0) + R(1); reads = R(0) + R(1)
            elif op in ("v_add_co_u32", "v_addc_co_u32", "v_sub_co_u32"):
                writes = R(0) + R(1); reads = sum((R(i) for i in range(2, len(ops))), [])
            else:
                writes = R(0); reads = sum((R(i) for i in range(1, len(ops))), [])
                if op.startswith("v_fmac") or op.startswith("v_dot2c") or op.startswith("v_pk_fmac"):
                    reads = reads + R(0)
            isdot = op.startswith("v_dot")
            istrans = op in TRANS
            kind = "dot" if isdot else ("trans" if istrans else "valu")
            for r in reads:
                if r[0] == "s":
                    need = max(need, self._dist(r, {"valu": 2}))
                    continue
                t = {"mfma8": 12, "mfma4": 8}
                if not istrans: t["trans"] = 1
                p = self.w.get(r)
                if p and p[1] == "dot":
                    acc = (R(0)[0] == r) and p[2] == op
                    if not acc: t["dot"] = 3
                if op.startswith("v_permlane"):
                    t.update({"valu": 2, "trans": 2, "dot": 3})
                if op in ("v_readfirstlane_b32", "v_readlane_b32"):
                    t.update({"valu": 1, "trans": 1, "dot": 3})
                if "dpp" in op or any(m.startswith("row_") or m.startswith("quad_perm") for m in mods):
                    t.update({"valu": 2, "trans": 2, "dot": 3})
                need = max(need, self._dist(r, t))
            for r in writes:
                if r[0] == "s": continue
                t = {"mfma8": 12, "mfma4": 8}
                p = self.w.get(r)
                if p and p[1] == "dot" and p[2] != op: t["dot"] = 3
                need = max(need, self._dist(r, t))
                if r in self.mfma_c:
                    pp, passes = self.mfma_c[r]
                    need = max(need, (7 if passes == 8 else 3) - (self.pos - pp - 1))
                if r in self.st:
                    need = max(need, 2 - (self.pos - self.st[r] - 1))
        elif is_vmem or is_ds:
            lds = "lds" in mods
            isload = ("load" in op or "read" in op or "bpermute" in op or "swizzle" in op) and not lds
            allr = sum((R(i) for i in range(len(ops))), [])
            if isload:
                writes = R(0); reads = sum((R(i) for i in range(1, len(ops))), [])
            else:
                reads = allr
            if lds: reads = reads + [("s", "m0")]
            kind = "mem"
            for r in reads:
                if r[0] == "s":
                    if r[1] == "m0":
                        need = max(need, self._dist(r, {"salu": 1}))
                    elif is_vmem:
                        need = max(need, self._dist(r, {"valu": 5}))
                else:
                    need = max(need, self._dist(r, {"mfma8": 12, "mfma4": 8, "dot": 3, "trans": 1}))
            for r in writes:
                need = max(need, self._dist(r, {"mfma8": 12, "mfma4": 8}))
                if r in self.st:
                    need = max(need, 1 - (self.pos - self.st[r] - 1))
        elif op.startswith("s_"):
            kind = "salu"
            if op in ("s_nop",):
                n = int(ops[0], 0) + 1
                self.lines.append("    " + l); self.pos += n; return
            if op.startswith("s_cmp") or op.startswith("s_cbranch") or op in ("s_branch", "s_barrier", "s_waitcnt", "s_endpgm", "s_setprio", "s_sleep"):
                writes = []
                reads = sum((R(i) for i in range(len(ops))), []) if op.startswith("s_cmp") else []
                if op in ("s_cbranch_vccz", "s_cbranch_vccnz"): reads = [("s", "vcc")]
            else:
                writes = R(0); reads = sum((R(i) for i in range(1, len(ops))), [])
                if "saveexec" in op: writes = writes + [("s", "exec")]
            for r in reads:
                need = max(need, self._dist(r, {"valu": 2}))
        if need > 0 and self.autonop:
            n = need
            while n > 0:
                k = min(n, 16)
                self.lines.append("    s_nop %d" % (k - 1))
                self.pos += k; n -= k
                self.nops += 1
        self.lines.append("    " + l)
        if op.startswith("s_cbranch") or op == "s_branch":
            if ops[0] not in self.seen and ops[0] not in self.fwd:
                self.fwd[ops[0]] = self.pos
        if is_mfma:
            for r in writes:
                self.w[r] = (self.pos, "mfma%d" % kind[1], tuple(writes))
            for r in creads:
                self.mfma_c[r] = (self.pos, kind[1])
        else:
            for r in writes:
                self.w[r] = (self.pos, kind, op)
            if is_vmem and "store" in op and ("x4" in op or "x3" in op):
                data = R(0) if op.startswith("buffer_") else R(1)
                for r in data: self.st[r] = self.pos
        self.pos += 1
    def _dist(self, r, table):
        p = self.w.get(r)
        if not p: return 0
        req = table.get(p[1], 0)
        have = self.pos - p[0] - 1
        return max(0, req - have)
    def label(self, name):
        self.lines.append(name + ":")
        if name in self.fwd:
            bpos = self.fwd.pop(name)
            delta = self.pos - (bpos + 1)
            if delta > 0:
                for d in (self.w, self.mfma_c):
                    for k, v in list(d.items()):
                        if v[0] > bpos: d[k] = (v[0] - delta,) + tuple(v[1:])
                for k, v in list(self.st.items()):
                    if v > bpos: self.st[k] = v - delta
                for k, v in list(self.fwd.items()):
                    if v > bpos: self.fwd[k] = v - delta
                self.pos -= delta
        self.seen.add(name)
    def newlabel(self, base="L"):
        self._lbl += 1
        return "%s_%d" % (base, self._lbl)
    def comment(self, s):
        self.lines.append("    ; " + s)
    def text(self):
        return "\n".join(self.lines) + "\n"

def kernel_header(name):
    return (".globl %s\n.p2align 8\n.type %s,@function\n%s:\n" % (name, name, name))

def kernel_desc(name, vgpr, sgpr=102, accum=None, wg_y=False):
    if accum is None:
        accum = ((vgpr + 3) // 4) * 4
        accum = min(accum, 256)
    s = ".p2align 6\n.amdhsa_kernel %s\n" % name
    s += "  .amdhsa_next_free_vgpr %d\n" % vgpr
    s += "  .amdhsa_next_free_sgpr %d\n" % sgpr
    s += "  .amdhsa_accum_offset %d\n" % accum
    s += "  .amdhsa_group_segment_fixed_size 0\n"
    s += "  .amdhsa_kernarg_size 112\n"
    s += "  .amdhsa_user_sgpr_count 2\n"
    s += "  .amdhsa_user_sgpr_kernarg_segment_ptr 1\n"
    s += "  .amdhsa_system_sgpr_workgroup_id_x 1\n"
    if wg_y:
        s += "  .amdhsa_system_sgpr_workgroup_id_y 1\n"
    s += ".end_amdhsa_kernel\n"
    return s

def vr(a, n):
    return "v[%d:%d]" % (a, a + n - 1) if n > 1 else "v%d" % a
def sr(a, n):
    return "s[%d:%d]" % (a, a + n - 1) if n > 1 else "s%d" % a
```

```python
import sys, struct, math
from asmlib import *

S, D, F, FH = 2048, 448, 1792, 896
Z1F = 0x0000000
Z2F = 0x0400000
PF  = 0x0800000
UR  = 0x0C00000
URS = 4096 + 128
YT  = 0x0E00000
STATS = 0x1000000
XST = 0x1080000
TSB = 0x1090000
WS_SIZE = 0x1100000
DIAG = False
OPT = dict(k1_touch=0, k1_wsp=1, k2_zpf=1, k2_k3pf=1, ZD=12, NSLOT2=6, k1_wout=1)

def f32(x):
    return "0x%08x" % struct.unpack("<I", struct.pack("<f", x))[0]

class Em:
    def __init__(self, a):
        self.a = a
        self.v = []
        self.l = []
    def _cnt(self, lst, tag, mx):
        tags = tag if isinstance(tag, (list, set)) else [tag]
        idx = [i for i, t in enumerate(lst) if t in tags]
        if not idx: return None
        n = len(lst) - 1 - max(idx)
        return min(n, mx)
    def __call__(self, it):
        if isinstance(it, str):
            self.a(it)
        elif isinstance(it, list):
            for x in it: self(x)
        elif it[0] == 'v':
            self.a(it[1]); self.v.append(it[2])
        elif it[0] == 'l':
            self.a(it[1]); self.l.append(it[2])
        elif it[0] == 'wv':
            n = self._cnt(self.v, it[1], 63)
            if n is not None: self.a(f"s_waitcnt vmcnt({n})")
        elif it[0] == 'wl':
            n = self._cnt(self.l, it[1], 15)
            if n is not None: self.a(f"s_waitcnt lgkmcnt({n})")
        elif it[0] == 'wvl':
            n = self._cnt(self.v, it[1], 63); m = self._cnt(self.l, it[2], 15)
            s = "s_waitcnt"
            if n is not None: s += f" vmcnt({n})"
            if m is not None: s += f" lgkmcnt({m})"
            self.a(s)
        else:
            raise ValueError(it)

def lines(s):
    return [l.strip() for l in s.strip("\n").split("\n") if l.strip()]

def merge(A, B, ratio):
    out = []
    bi = 0
    acc = 0.0
    for it in A:
        out.append(it)
        txt = it if isinstance(it, str) else ""
        if txt.startswith("v_mfma"):
            acc += ratio
            while acc >= 1.0 and bi < len(B):
                out.append(B[bi]); bi += 1; acc -= 1.0
    out += B[bi:]
    return out

def stamp(i):
    if not DIAG: return []
    r = [f"s_memrealtime s[{70+2*i}:{71+2*i}]"]
    if i == 0: r.append("s_memtime s[86:87]")
    if i == 7: r.append("s_memtime s[88:89]")
    return r
def stamp_out(kidx, srdreg=20, wavereg=24):
    if not DIAG: return []
    r = ["s_waitcnt vmcnt(0)"] + stamp(7)
    r += lines(f"""
    s_waitcnt lgkmcnt(0)
    s_mov_b64 exec, -1
    s_lshl_b32 s68, s2, 3
    s_add_u32 s68, s68, s{wavereg}
    s_lshl_b32 s68, s68, 6
    s_add_u32 s68, s68, {TSB + kidx*0x20000}
    v_mov_b32 v1, 0
    """)
    r.append("s_getreg_b32 s90, hwreg(HW_REG_XCC_ID)")
    for i in range(11):
        r.append(f"v_mov_b32 v2, s{70+2*i}")
        r.append(f"buffer_store_dword v2, v1, s[{srdreg}:{srdreg+3}], s68 offen offset:{4*i}")
    return r

def srd(dst, ptr, size):
    return lines(f"""
    s_mov_b32 s{dst}, s{ptr}
    s_and_b32 s{dst+1}, s{ptr+1}, 0xffff
    s_mov_b32 s{dst+2}, {size}
    s_mov_b32 s{dst+3}, 0x20000
    """)

def rbf16(dst, src):
    return [f"v_cvt_pk_bf16_f32 v{dst}, v{src}, v{src}", f"v_and_b32 v{dst}, 0xffff0000, v{dst}"]

def halfsum(v, t):
    return [f"v_mov_b32 v{t}, v{v}", f"v_permlane32_swap_b32 v{v}, v{t}", f"v_add_f32 v{v}, v{v}, v{t}"]

def ln_stats(vsum, vsq, n, vm, vsd, vr_):
    t = vsd
    r = [f"v_mul_f32 v{vsum}, {f32(1.0/n)}, v{vsum}",
         f"v_mul_f32 v{vsq}, {f32(1.0/n)}, v{vsq}",
         f"v_fma_f32 v{t}, -v{vsum}, v{vsum}, v{vsq}",
         f"v_max_f32 v{t}, 0, v{t}"]
    r += rbf16(vm, vsum) + rbf16(t, t)
    r += [f"v_add_f32 v{t}, {f32(1e-5)}, v{t}"] + rbf16(t, t)
    r += [f"v_sqrt_f32 v{t}, v{t}"] + rbf16(t, t)
    r += [f"v_rcp_f32 v{vr_}, v{t}"]
    return r

TR_ADDR = """
    v_lshrrev_b32 v12, 5, v1
    v_bfe_u32 v13, v1, 2, 2
    v_lshl_add_u32 v14, v12, 3, v13
    v_lshlrev_b32 v14, 7, v14
    v_bfe_u32 v15, v1, 4, 1
    v_lshl_add_u32 v14, v15, 5, v14
    v_and_b32 v15, 3, v1
    v_lshl_add_u32 v14, v15, 3, v14
    v_bfe_u32 v15, v1, 3, 1
    v_lshl_add_u32 v14, v15, 6, v14
"""

def gen_k1(name):
    a = Asm(); e = Em(a)
    STF = ["", " sc1", " nt", " sc0 sc1"][OPT.get("k1_stf", 0)]
    WR = 114688
    CSP = WR + 5 * 8192
    CSW = CSP + 2048
    e(lines(f"""
    s_cmp_ge_u32 s2, 256
    s_cbranch_scc1 {name}_end
    s_load_dwordx2 s[62:63], s[0:1], 64
    s_load_dwordx2 s[64:65], s[0:1], 80
    s_load_dwordx2 s[66:67], s[0:1], 32
    s_cmp_ge_u32 s2, 224
    s_cbranch_scc1 {name}_side
    s_load_dwordx2 s[4:5], s[0:1], 0
    s_load_dwordx2 s[6:7], s[0:1], 56
    s_load_dwordx4 s[8:11], s[0:1], 96
    s_memrealtime s[60:61]
    v_lshrrev_b32 v1, 6, v0
    v_readfirstlane_b32 s24, v1
    v_and_b32 v1, 63, v0
    s_and_b32 s28, s2, 7
    s_lshr_b32 s29, s2, 3
    s_mul_i32 s30, s29, 37
    s_lshr_b32 s30, s30, 8
    s_mul_i32 s31, s30, 7
    s_sub_u32 s31, s29, s31
    s_lshr_b32 s25, s28, 1
    s_lshl_b32 s25, s25, 2
    s_add_u32 s25, s25, s30
    s_and_b32 s26, s28, 1
    s_mul_i32 s26, s26, 7
    s_add_u32 s26, s26, s31
    v_lshrrev_b32 v11, 3, v1
    v_and_b32 v12, 7, v1
    v_lshrrev_b32 v13, 4, v1
    v_mul_u32_u24 v14, 896, v11
    v_xor_b32 v15, v12, v13
    v_lshl_add_u32 v2, v15, 4, v14
    v_xor_b32 v15, 4, v15
    v_lshl_add_u32 v3, v15, 4, v14
    v_add_u32 v3, {8*896}, v3
    v_mul_u32_u24 v14, 3584, v11
    v_and_b32 v15, 1, v13
    v_lshlrev_b32 v15, 2, v15
    v_xor_b32 v15, v12, v15
    v_lshl_add_u32 v4, v15, 4, v14
    s_lshl_b32 s34, s25, 2
    s_add_u32 s34, s34, s24
    s_mul_i32 s35, s34, {32*896}
    s_mul_i32 s36, s24, {16*3584}
    s_lshl_b32 s37, s26, 7
    s_add_u32 s38, s36, s37
    s_add_u32 s37, s38, {FH*2}
    s_lshl_b32 s39, s24, 12
    s_lshl_b32 s47, s24, 11
    s_add_u32 s47, s47, {WR}
    s_lshl_b32 s49, s29, 2
    s_add_u32 s49, s49, s24
    s_waitcnt lgkmcnt(0)
    """))
    e(stamp(0))
    e(srd(12, 4, S * D * 2)); e(srd(16, 6, D * F * 2)); e(srd(20, 10, WS_SIZE))
    lbl = name + "_nononce"
    e(lines(f"""
    s_or_b32 s32, s26, s24
    s_cmp_lg_u32 s32, 0
    s_cbranch_scc1 {lbl}
    s_or_b32 s61, s61, 0x80000000
    v_mov_b32 v12, s60
    v_mov_b32 v13, s61
    s_lshl_b32 s32, s25, 3
    v_mov_b32 v14, s32
    global_store_dwordx2 v14, v[12:13], s[8:9] sc0 sc1
    {lbl}:
    """))
    if OPT["k1_touch"]:
        e(lines(f"""
        v_lshrrev_b32 v11, 4, v1
        v_mul_u32_u24 v11, 3584, v11
        v_and_b32 v12, 15, v1
        v_min_u32 v12, 13, v12
        v_lshlrev_b32 v13, 7, v12
        v_cmp_lt_u32 vcc, 6, v12
        v_mov_b32 v14, 896
        v_cndmask_b32 v14, 0, v14, vcc
        v_add3_u32 v11, v11, v13, v14
        s_mul_i32 s32, s49, {4*3584}
        s_and_b32 s33, s28, 1
        s_mul_i32 s33, s33, 896
        s_add_u32 s32, s32, s33
        v_and_b32 v12, 31, v1
        v_lshlrev_b32 v12, 7, v12
        s_lshr_b32 s33, s28, 1
        s_mul_i32 s33, s33, {512*896}
        s_lshl_b32 s40, s49, 12
        s_add_u32 s33, s33, s40
        """))
        e(('v', "buffer_load_dword v236, v11, s[16:19], s32 offen", "touch"))
        e(('v', "buffer_load_dword v237, v12, s[12:15], s33 offen", "touch"))
    def dma_x(i):
        r = []
        for i4 in range(4):
            g = [f"s_add_u32 s32, s35, {i*128 + (i4 >> 1)*16*896}",
                 f"s_add_u32 m0, s39, {i*16384 + i4*1024}",
                 ('v', f"buffer_load_dwordx4 v{2 + (i4 & 1)}, s[12:15], s32 offen lds", ("x", i))]
            r.append(g)
        return r
    def wloc(st):
        if st < 5: return ("s47", st * 8192, 2048)
        if st < 7: return ("s39", (st - 5) * 16384 + 2048, 4096)
        return ("s39", (st - 7) * 16384, 4096)
    def dma_w(st):
        base = 37 if st < 7 else 38
        sb, off, _ = wloc(st)
        r = []
        for i2 in range(2):
            r.append([f"s_add_u32 s33, s{base}, {(st % 7)*64*3584 + i2*8*3584}",
                      f"s_add_u32 m0, {sb}, {off + i2*1024}",
                      ('v', f"buffer_load_dwordx4 v4, s[16:19], s33 offen lds", ("w", st))])
        return r
    for i in range(3):
        e(dma_x(i)); e(dma_w(i))
    e(lines(f"""
    v_and_b32 v11, 31, v1
    v_lshrrev_b32 v12, 5, v1
    v_bfe_u32 v13, v1, 1, 3
    v_xor_b32 v13, v13, v12
    v_lshlrev_b32 v14, 7, v11
    v_add_u32 v14, s39, v14
    v_lshl_add_u32 v5, v13, 4, v14
    v_xor_b32 v6, 32, v5
    v_xor_b32 v7, 64, v5
    v_xor_b32 v8, 96, v5
    v_add_u32 v232, 0x10000, v5
    v_add_u32 v233, 0x10000, v6
    v_add_u32 v234, 0x10000, v7
    v_add_u32 v235, 0x10000, v8
    """ + TR_ADDR + f"""
    v_add_u32 v9, {WR}, v14
    v_xor_b32 v10, 64, v9
    v_mov_b32 v238, v14
    v_xor_b32 v239, 64, v14
    v_add_u32 v240, 0x10000, v238
    v_add_u32 v241, 0x10000, v239
    s_mov_b32 s48, 0x3f803f80
    """))
    ACC = [16, 48]
    FB = 80
    SX, SQ = 116, 120
    CSA = 184
    NON = 230
    CSV = 124
    Z2P = 156
    TMP = 172
    GRN = 180
    GR = 80
    Z1P = 212
    for r in list(range(16, 80)) + list(range(116, 124)) + list(range(CSA, CSA + 8)):
        e(f"v_mov_b32 v{r}, 0")
    def fb(k): return FB + 12 * (k % 3)
    def reads(k):
        st, ks = k >> 2, k & 3
        r = []
        if st < 7:
            ad, o = (5 + ks, st * 16384) if st < 4 else (232 + ks, (st - 4) * 16384)
            r.append(('l', f"ds_read_b128 {vr(fb(k),4)}, v{ad} offset:{o}", ("f", k)))
        sb, off, kst = wloc(st)
        for sub in range(2):
            for h in range(2):
                o2 = off + ks * kst + h * 512
                if sb == "s47": ad2 = 9 + sub
                elif o2 < 65536: ad2 = 238 + sub
                else: ad2 = 240 + sub; o2 -= 65536
                r.append(('l', f"ds_read_b64_tr_b16 {vr(fb(k)+4+4*sub+2*h,2)}, v{ad2} offset:{o2}", ("f", k)))
        return r
    def xkeep(k):
        st, ks = k >> 2, k & 3
        ad, o = (5 + ks, st * 16384) if st < 4 else (232 + ks, (st - 4) * 16384)
        return ('l', f"ds_read_b128 a[{4*k}:{4*k+3}], v{ad} offset:{o}", ("xk", k))
    def compute(k):
        p = k // 28
        ks = k & 3
        b = fb(k)
        xop = vr(b, 4) if p == 0 else f"a[{4*(k-28)}:{4*(k-28)+3}]"
        r = []
        for sub in range(2):
            r.append(f"v_mfma_f32_32x32x16_bf16 {vr(ACC[p]+16*sub,16)}, {vr(b+4+4*sub,4)}, {xop}, {vr(ACC[p]+16*sub,16)}")
        if p == 0 and not OPT.get("x_nodots"):
            for q in range(4):
                r.append(f"v_dot2c_f32_bf16 v{SX+q}, s48, v{b+q}")
                r.append(f"v_dot2c_f32_bf16 v{SQ+q}, v{b+q}, v{b+q}")
        l2 = a.newlabel(name + "_cs")
        g = [f"s_cmp_lg_u32 s24, {ks}", f"s_cbranch_scc1 {l2}"]
        for q in range(4):
            for sub in range(2):
                g.append(f"v_dot2c_f32_bf16 v{CSA+4*sub+q}, s48, v{b+4+4*sub+q}")
        g.append(f"{l2}:")
        if not OPT.get("x_nocs"): r.append(g)
        return r
    sched = {k: [] for k in range(28)}
    for i, st in enumerate(range(3, 7)):
        lst = dma_x(st) + dma_w(st)
        per = [2, 2, 1, 1]
        c = 0
        for t in range(4):
            sched[4 * i + t] += lst[c:c + per[t]]; c += per[t]
    w1 = []
    for st in range(7, 13): w1 += dma_w(st)
    for t, g in enumerate(w1): sched[16 + t].append(g)
    def sync(st):
        return [('wv', [("x", st), ("w", st)]), "s_barrier"]
    e(sync(0)); e(stamp(1))
    e(reads(0)); e(reads(1))
    for k in range(28):
        if not OPT.get("x_nokeep"): e(xkeep(k))
        if k + 2 < 28:
            if (k + 2) % 4 == 0: e(sync((k + 2) >> 2))
            e(reads(k + 2))
        e(sched[k])
        if k == 20:
            e([f"s_lshl_b32 s32, s25, 3", "v_mov_b32 v11, s32", ('v', f"global_load_dwordx2 {vr(NON,2)}, v11, s[8:9] sc0 sc1", "nonce")])
        e(('wl', ("f", k)))
        e(compute(k))
    e(stamp(2))
    e(('wl', ("xk", 27)))
    e(dma_w(13))
    if OPT["k1_wsp"]:
        e(srd(52, 62, S * S * 2))
        e(lines(f"""
        v_lshlrev_b32 v11, 7, v1
        s_lshr_b32 s32, s28, 1
        s_lshl_b32 s32, s32, 21
        s_lshl_b32 s33, s49, 13
        s_add_u32 s32, s32, s33
        s_add_u32 s33, s32, {112*8192}
        s_add_u32 s40, s32, {224*8192}
        s_cmp_lt_u32 s49, 32
        s_cselect_b32 s40, s40, s32
        """))
        e([('v', "buffer_load_dword v236, v11, s[52:55], s32 offen", "touch2"),
           ('v', "buffer_load_dword v237, v11, s[52:55], s33 offen", "touch2"),
           ('v', "buffer_load_dword v236, v11, s[52:55], s40 offen", "touch2")])
        e(srd(52, 66, D * S * 2))
        e(srd(56, 64, FH * D * 2))
        e(lines(f"""
        v_and_b32 v12, 0x780, v11
        s_lshl_b32 s32, s2, 13
        s_lshl_b32 s33, s24, 11
        s_add_u32 s32, s32, s33
        v_and_b32 v13, 0x380, v11
        s_lshl_b32 s33, s2, 2
        s_add_u32 s33, s33, s24
        s_lshl_b32 s33, s33, 10
        """))
        e([('v', "buffer_load_dword v237, v12, s[52:55], s32 offen", "touch2"),
           ('v', "buffer_load_dword v236, v13, s[56:59], s33 offen", "touch2")])
    def cs_write(p):
        return lines(f"""
        s_lshl_b32 s32, s24, 2
        s_add_u32 s32, s32, {CSP + p*1024}
        v_lshl_add_u32 v11, v1, 4, s32
        s_nop 1
        v_add_f32 v{CSA}, v{CSA}, v{CSA+1}
        v_add_f32 v{CSA+2}, v{CSA+2}, v{CSA+3}
        v_add_f32 v{CSA+4}, v{CSA+4}, v{CSA+5}
        v_add_f32 v{CSA+6}, v{CSA+6}, v{CSA+7}
        v_add_f32 v12, v{CSA}, v{CSA+2}
        v_add_f32 v13, v{CSA+4}, v{CSA+6}
        v_permlane32_swap_b32 v12, v13
        v_add_f32 v12, v12, v13
        """) + [('l', f"ds_write_b32 v11, v12", "csw")] + [f"v_mov_b32 v{CSA+i}, 0" for i in range(8)]
    def cs_read(p, mid):
        r = [f"v_lshlrev_b32 v11, 4, v1", f"v_add_u32 v11, {CSP + p*1024}, v11",
             ('l', f"ds_read_b128 v[224:227], v11", "csr"),
             f"s_lshl_b32 s41, s24, 8", f"s_add_u32 s41, s41, {CSW}",
             f"v_lshl_add_u32 v12, v1, 2, s41",
             f"v_lshrrev_b32 v13, 5, v1", f"v_lshl_add_u32 v13, v13, 4, s41",
             ('wl', "csr"),
             "v_add_f32 v224, v224, v225", "v_add_f32 v226, v226, v227", "v_add_f32 v224, v224, v226",
             ('l', "ds_write_b32 v12, v224", "csw2")]
        for sub in range(2):
            for g in range(4):
                r.append(('l', f"ds_read_b128 {vr(CSV+16*sub+4*g,4)}, v13 offset:{sub*128+g*32}", "csv"))
        r += mid
        r.append(('wl', "csv"))
        return r
    c0 = -2.0 * math.sqrt(2.0 / math.pi) * math.log2(math.e)
    c1 = c0 * 0.044715
    VNM, VK0, VK1, VSD, VMX = 242, 244, 246, 248, 250
    def gelu_pack(p, dst):
        r = []
        G = 4
        for g0 in range(0, 16, G):
            prs = range(g0, g0 + G)
            z = {q: ACC[p] + 2*q for q in prs}
            t = {q: TMP + 2*(q - g0) for q in prs}
            for q in prs: r.append(f"v_pk_fma_f32 {vr(z[q],2)}, {vr(CSV+2*q,2)}, {vr(VNM,2)}, {vr(z[q],2)} op_sel_hi:[1,0,1]")
            for q in prs: r.append(f"v_pk_mul_f32 {vr(t[q],2)}, {vr(z[q],2)}, {vr(z[q],2)}")
            for q in prs: r.append(f"v_pk_fma_f32 {vr(t[q],2)}, {vr(t[q],2)}, {vr(VK1,2)}, {vr(VK0,2)} op_sel_hi:[1,0,0]")
            for q in prs: r.append(f"v_pk_mul_f32 {vr(t[q],2)}, {vr(t[q],2)}, {vr(z[q],2)}")
            for q in prs:
                r.append(f"v_exp_f32 v{t[q]}, v{t[q]}")
                r.append(f"v_exp_f32 v{t[q]+1}, v{t[q]+1}")
            for q in prs: r.append(f"v_pk_fma_f32 {vr(t[q],2)}, {vr(t[q],2)}, {vr(VSD,2)}, {vr(VSD,2)} op_sel_hi:[1,0,0]")
            for q in prs:
                r.append(f"v_rcp_f32 v{t[q]}, v{t[q]}")
                r.append(f"v_rcp_f32 v{t[q]+1}, v{t[q]+1}")
            for q in prs: r.append(f"v_pk_mul_f32 {vr(z[q],2)}, {vr(z[q],2)}, {vr(t[q],2)}")
            for q in prs: r.append(f"v_cvt_pk_bf16_f32 v{dst+q}, v{z[q]}, v{z[q]+1}")
        return r
    e(cs_write(0))
    e([('wvl', ("w", 10), "csw"), "s_barrier"])
    def sum4(dst, b):
        return [f"v_add_f32 v{b}, v{b}, v{b+1}", f"v_add_f32 v{b+2}, v{b+2}, v{b+3}", f"v_add_f32 v{dst}, v{b}, v{b+2}"]
    xst = sum4(SX, SX) + sum4(SQ, SQ)
    xst += halfsum(SX, 14) + halfsum(SQ, 15)
    xst += ln_stats(SX, SQ, D, VMX, VSD, VMX + 1)
    xst += lines(f"""
    v_sub_f32 v{VNM}, 0, v{VMX}
    v_mul_f32 v{VK0}, {f32(c0)}, v{VMX+1}
    v_mul_f32 v{VK1}, v{VMX+1}, v{VMX+1}
    v_mul_f32 v{VK1}, v{VK1}, v{VMX+1}
    v_mul_f32 v{VK1}, {f32(c1)}, v{VK1}
    """)
    def gelu_scalar(p, dst):
        r = []
        G = 8
        for g0 in range(0, 32, G):
            es = range(g0, g0 + G)
            z = {q: ACC[p] + q for q in es}
            t = {q: TMP + (q - g0) for q in es}
            for q in es: r.append(f"v_fmac_f32 v{z[q]}, v{CSV+q}, v{VNM}")
            for q in es: r.append(f"v_mul_f32 v{t[q]}, v{z[q]}, v{z[q]}")
            for q in es: r.append(f"v_fma_f32 v{t[q]}, v{t[q]}, v{VK1}, v{VK0}")
            for q in es: r.append(f"v_mul_f32 v{t[q]}, v{t[q]}, v{z[q]}")
            for q in es: r.append(f"v_exp_f32 v{t[q]}, v{t[q]}")
            for q in es: r.append(f"v_fma_f32 v{t[q]}, v{t[q]}, v{VSD}, v{VSD}")
            for q in es: r.append(f"v_rcp_f32 v{t[q]}, v{t[q]}")
            for q in es: r.append(f"v_mul_f32 v{z[q]}, v{z[q]}, v{t[q]}")
            for q in es:
                if q & 1: r.append(f"v_cvt_pk_bf16_f32 v{dst+q//2}, v{z[q-1]}, v{z[q]}")
        return r
    B = cs_read(0, xst) + (gelu_scalar(0, Z2P) if OPT.get("k1_merge", 1) else gelu_pack(0, Z2P))
    B += [f"v_mov_b32 v{r}, 0" for r in range(SX, SX + 8)]
    dots = []
    for q in range(16):
        dots.append(f"v_dot2c_f32_bf16 v{SX+(q&3)}, s48, v{Z2P+q}")
        dots.append(f"v_dot2c_f32_bf16 v{SQ+(q&3)}, v{Z2P+q}, v{Z2P+q}")
    B.append(dots)
    B += sum4(GRN, SX) + sum4(GRN + 2, SQ)
    B += halfsum(GRN, 14) + halfsum(GRN + 2, 15)
    lr, lo = name + "_nretry", name + "_nok"
    pub = [('wv', "nonce")] + lines(f"""
    s_mov_b32 s50, 0
    {lr}:
    v_readfirstlane_b32 s51, v{NON+1}
    s_cmp_lg_u32 s51, 0
    s_cbranch_scc1 {lo}
    s_add_u32 s50, s50, 1
    s_cmp_gt_u32 s50, 0x100000
    s_cbranch_scc1 {lo}
    s_sleep 1
    s_lshl_b32 s32, s25, 3
    v_mov_b32 v11, s32
    global_load_dwordx2 {vr(NON,2)}, v11, s[8:9] sc0 sc1
    s_waitcnt vmcnt(0)
    s_branch {lr}
    {lo}:
    v_mov_b32 v{GRN+1}, v{NON}
    v_mov_b32 v{GRN+3}, v{NON+1}
    s_mul_i32 s42, s34, {14*512}
    s_add_u32 s42, s42, {STATS}
    s_lshl_b32 s32, s26, 9
    s_add_u32 s32, s32, s42
    v_and_b32 v11, 31, v1
    v_lshlrev_b32 v11, 4, v11
    """) + [('v', f"buffer_store_dwordx4 {vr(GRN,4)}, v11, s[20:23], s32 offen sc0 sc1", "pub")] + stamp(3)
    B.append(pub)
    A = reads(28) + reads(29)
    for k in range(28, 56):
        if k + 2 < 56:
            if k + 2 == 44: A.append([('wv', ("w", 13)), "s_barrier"])
            A += reads(k + 2)
        A.append(('wl', ("f", k)))
        A += compute(k)
    if OPT.get("k1_merge", 1): e(merge(A, B, OPT.get("k1_ratio", 7.0)))
    else: e(A[:10] + B + A[10:])
    e(stamp(4))
    def gran_loads():
        return [('v', f"buffer_load_dwordx4 {vr(GR+4*i,4)}, v15, s[20:23], s42 offen offset:{i*512} sc0 sc1", "gr") for i in range(7)]
    e(cs_write(1))
    e(lines(f"""
    v_and_b32 v15, 31, v1
    v_lshlrev_b32 v15, 4, v15
    v_lshrrev_b32 v14, 5, v1
    v_mul_u32_u24 v14, 3584, v14
    v_add_u32 v15, v15, v14
    """))
    e([('wl', "csw"), "s_barrier"])
    taddr = lines(f"""
    v_and_b32 v2, 31, v1
    v_lshlrev_b32 v3, 7, v2
    v_add_u32 v3, s39, v3
    v_add_u32 v3, {WR}, v3
    v_and_b32 v4, 1, v1
    v_lshrrev_b32 v5, 5, v1
    v_xor_b32 v4, v4, v5
    v_bfe_u32 v5, v1, 1, 1
    v_lshl_or_b32 v4, v5, 3, v4
    v_bfe_u32 v5, v1, 3, 1
    v_lshl_or_b32 v4, v5, 2, v4
    v_bfe_u32 v5, v1, 2, 1
    v_lshl_or_b32 v4, v5, 1, v4
    v_lshl_add_u32 v228, v4, 3, v3
    v_lshrrev_b32 v2, 5, v1
    v_bfe_u32 v3, v1, 2, 2
    v_lshl_add_u32 v3, v2, 3, v3
    v_lshlrev_b32 v3, 7, v3
    v_add_u32 v3, s39, v3
    v_add_u32 v3, {WR}, v3
    v_and_b32 v4, 3, v1
    v_bfe_u32 v5, v1, 4, 1
    v_xor_b32 v5, v5, v2
    v_lshl_or_b32 v4, v5, 2, v4
    v_bfe_u32 v5, v1, 2, 1
    v_xor_b32 v4, v4, v5
    v_bfe_u32 v5, v1, 3, 1
    v_lshl_or_b32 v4, v5, 3, v4
    v_lshl_add_u32 v229, v4, 3, v3
    """)
    unp = []
    for q in range(16):
        t = 16 + 2 * q
        unp += [f"v_lshlrev_b32 v{t}, 16, v{Z2P+q}", f"v_and_b32 v{t+1}, 0xffff0000, v{Z2P+q}"]
    e(cs_read(1, taddr + unp))
    g1 = gelu_pack(1, Z1P)
    half = len(g1) // 2
    e(g1[:half])
    e(gran_loads())
    e(g1[half:])
    e(lines(f"""
    v_lshlrev_b32 v11, 4, v1
    s_lshl_b32 s32, s26, 7
    s_add_u32 s32, s32, s34
    s_lshl_b32 s32, s32, 11
    s_add_u32 s33, s32, {64*2048}
    """))
    for sub in range(2):
        for h in range(2):
            e(('v', f"buffer_store_dwordx4 {vr(Z1P+8*sub+4*h,4)}, v11, s[20:23], s{32+sub} offen offset:{h*1024}{STF}", "z1"))
    e(stamp(5))
    lr, lo = name + "_gretry", name + "_gok"
    e(["s_mov_b32 s50, 0", ('wv', "gr"), f"{lr}:"])
    e(lines(f"v_xor_b32 v12, v{GR+1}, v{NON}\nv_xor_b32 v13, v{GR+3}, v{NON+1}\nv_or_b32 v12, v12, v13"))
    for i in range(1, 7):
        e(lines(f"v_xor_b32 v13, v{GR+4*i+1}, v{NON}\nv_xor_b32 v14, v{GR+4*i+3}, v{NON+1}\nv_or3_b32 v12, v12, v13, v14"))
    e(lines(f"""
    v_cmp_ne_u32 vcc, 0, v12
    s_cbranch_vccz {lo}
    s_add_u32 s50, s50, 1
    s_cmp_gt_u32 s50, 0x100000
    s_cbranch_scc1 {lo}
    s_sleep 1
    """))
    e(gran_loads())
    e(lines(f"s_waitcnt vmcnt(0)\ns_branch {lr}\n{lo}:"))
    e(stamp(6))
    for i in range(1, 7):
        e(lines(f"v_add_f32 v{GR}, v{GR}, v{GR+4*i}\nv_add_f32 v{GR+2}, v{GR+2}, v{GR+4*i+2}"))
    e(halfsum(GR, 13) + halfsum(GR + 2, 14))
    VM2, VR2 = 252, 254
    e(ln_stats(GR, GR + 2, FH, VM2, 13, VR2))
    e([f"v_mul_f32 v{VM2}, v{VM2}, v{VR2}", f"v_sub_f32 v{VM2}, 0, v{VM2}"])
    for sub in range(2):
        for g in range(4):
            e(f"v_xor_b32 v{48+4*sub+g}, {(8*sub+2*g) << 3}, v228")
    for q in range(16):
        t = 16 + 2 * q
        e(f"v_pk_fma_f32 {vr(t,2)}, {vr(t,2)}, {vr(VR2,2)}, {vr(VM2,2)} op_sel_hi:[1,0,0]")
    for q in range(16):
        t = 16 + 2 * q
        e(f"v_cvt_pk_bf16_f32 v{Z2P+q}, v{t}, v{t+1}")
        if q & 1: e(('l', f"ds_write_b64 v{48+(q>>1)}, {vr(Z2P+q-1,2)}", "tw"))
    for sub in range(2):
        for h in range(2):
            e(f"v_xor_b32 v{56+2*sub+h}, {(8*sub+2*h) << 3}, v229")
    e(lines(f"""
    s_lshl_b32 s32, s26, 8
    s_lshl_b32 s33, s34, 1
    s_add_u32 s32, s32, s33
    s_lshl_b32 s32, s32, 10
    s_add_u32 s32, s32, {Z2F}
    s_add_u32 s33, s32, {128*1024}
    """))
    e(('wl', "tw"))
    for sub in range(2):
        for ks2 in range(2):
            for h in range(2):
                e(('l', f"ds_read_b64_tr_b16 {vr(96+8*sub+4*ks2+2*h,2)}, v{56+2*sub+h} offset:{(16*ks2+4*h)*128}", ("tr", sub, ks2)))
    for sub in range(2):
        for ks2 in range(2):
            e(('wl', ("tr", sub, ks2)))
            e(f"buffer_store_dwordx4 {vr(96+8*sub+4*ks2,4)}, v11, s[20:23], s{32+sub} offen offset:{ks2*1024}{STF}")
    lx = name + "_noxst"
    e(lines(f"""
    s_cmp_lg_u32 s26, 0
    s_cbranch_scc1 {lx}
    v_and_b32 v11, 31, v1
    v_lshlrev_b32 v11, 3, v11
    s_lshl_b32 s32, s34, 8
    s_add_u32 s32, s32, {XST}
    buffer_store_dwordx2 {vr(VMX,2)}, v11, s[20:23], s32 offen
    {lx}:
    """))
    e(stamp_out(0))
    e("s_endpgm")
    e = Em(a)
    e(lines(f"""
    {name}_side:
    s_load_dwordx4 s[4:7], s[0:1], 8
    s_load_dwordx2 s[8:9], s[0:1], 24
    s_load_dwordx2 s[10:11], s[0:1], 104
    s_load_dwordx2 s[44:45], s[0:1], 72
    s_load_dwordx2 s[46:47], s[0:1], 40
    v_lshrrev_b32 v1, 6, v0
    v_readfirstlane_b32 s24, v1
    v_and_b32 v1, 63, v0
    s_sub_u32 s25, s2, 224
    s_lshl_b32 s25, s25, 2
    s_add_u32 s25, s25, s24
    s_lshl_b32 s26, s25, 4
    s_mul_i32 s27, s26, 896
    v_lshlrev_b32 v2, 4, v1
    v_add_u32 v2, s27, v2
    v_add_u32 v3, {(-3*896) & 0xffffffff}, v2
    v_add_u32 v4, {(-2*896) & 0xffffffff}, v2
    v_add_u32 v5, {(-1*896) & 0xffffffff}, v2
    v_lshlrev_b32 v6, 6, v1
    s_lshl_b32 s33, s24, 1
    s_sub_u32 s33, 6, s33
    v_and_b32 v7, 7, v1
    v_xor_b32 v7, s33, v7
    v_lshlrev_b32 v7, 4, v7
    v_lshl_add_u32 v7, v1, 10, v7
    v_cmp_gt_u32 vcc, 56, v1
    s_and_b64 exec, exec, vcc
    s_waitcnt lgkmcnt(0)
    """))
    for i in range(8): e(stamp(i))
    e(srd(12, 4, S * D * 2)); e(srd(16, 6, S * D * 2)); e(srd(28, 8, D * 4 * 2)); e(srd(20, 10, WS_SIZE))
    KR, VRW, WRAW, WT, KW, TMP2 = 8, 84, 148, 164, 196, 228
    for i in range(4):
        e(('v', f"buffer_load_dwordx4 {vr(WRAW+4*i,4)}, v6, s[28:31], 0 offen offset:{16*i}", "w"))
    for r in range(3):
        e(('v', f"buffer_load_dwordx4 {vr(KR+4*r,4)}, v{3+r}, s[12:15], 0 offen", "h"))
    def ld(r):
        return [f"s_mov_b32 s32, {r*896}",
                ('v', f"buffer_load_dwordx4 {vr(KR+4*(r+3),4)}, v2, s[12:15], s32 offen", ("r", r)),
                ('v', f"buffer_load_dwordx4 {vr(VRW+4*r,4)}, v2, s[16:19], s32 offen", ("r", r))]
    AH = OPT.get('side_ah', 8)
    for r in range(AH): e(ld(r))
    e(('wv', "w"))
    for c in range(8):
        e([f"v_lshlrev_b32 v{WT+0*8+c}, 16, v{WRAW+2*c}", f"v_and_b32 v{WT+1*8+c}, 0xffff0000, v{WRAW+2*c}",
           f"v_lshlrev_b32 v{WT+2*8+c}, 16, v{WRAW+2*c+1}", f"v_and_b32 v{WT+3*8+c}, 0xffff0000, v{WRAW+2*c+1}"])
    def unpack(dst, src):
        r = []
        for q in range(4):
            r += [f"v_lshlrev_b32 v{dst+2*q}, 16, v{src+q}", f"v_and_b32 v{dst+2*q+1}, 0xffff0000, v{src+q}"]
        return r
    e(('wv', "h"))
    e(stamp(1))
    for r in range(3): e(unpack(KW + 8 * (r % 4), KR + 4 * r))
    outreg = lambda c: (148 + 4*c) if c < 4 else (240 + 4*(c-4))
    for r in range(16):
        if r + AH < 16: e(ld(r + AH))
        e(('wv', ("r", r)))
        e(unpack(KW + 8 * ((r + 3) % 4), KR + 4 * (r + 3)))
        acc = TMP2 if (r & 1) == 0 else KR + 4 * (r & ~1)
        for q in range(4):
            e(f"v_pk_mul_f32 {vr(acc+2*q,2)}, {vr(KW+8*((r+0)%4)+2*q,2)}, {vr(WT+3*8+2*q,2)}")
        for j in (2, 1, 0):
            for q in range(4):
                e(f"v_pk_fma_f32 {vr(acc+2*q,2)}, {vr(KW+8*((r+3-j)%4)+2*q,2)}, {vr(WT+j*8+2*q,2)}, {vr(acc+2*q,2)}")
        vt = KW + 8 * (r % 4)
        e(unpack(vt, VRW + 4 * r))
        for q in range(4):
            e(f"v_pk_mul_f32 {vr(acc+2*q,2)}, {vr(acc+2*q,2)}, {vr(vt+2*q,2)}")
        if r & 1:
            q = 3 - ((r & 7) >> 1)
            for c in range(8):
                e(f"v_cvt_pk_bf16_f32 v{outreg(c)+q}, v{acc+c}, v{TMP2+c}")
        if (r & 7) == 7:
            e(f"v_xor_b32 v3, {16 if r == 7 else 0}, v7")
            for c in range(8):
                e(('l', f"ds_write_b128 v3, {vr(outreg(c),4)} offset:{c*128}", "tw"))
    e(["s_mov_b64 exec, -1", ('wl', "tw"), "s_barrier"])
    e(lines(f"""
    v_lshrrev_b32 v4, 3, v1
    v_mul_u32_u24 v4, {URS}, v4
    v_and_b32 v5, 7, v1
    v_lshl_add_u32 v4, v5, 4, v4
    s_sub_u32 s33, s2, 224
    s_lshl_b32 s33, s33, 7
    s_sub_u32 s33, {UR + 4096 - 128}, s33
    s_mul_i32 s34, s24, {8*URS}
    s_add_u32 s33, s33, s34
    s_lshl_b32 s34, s24, 10
    v_lshl_add_u32 v5, v1, 4, s34
    s_lshl_b32 s34, s24, 4
    v_xor_b32 v5, s34, v5
    v_xor_b32 v6, 64, v5
    """))
    for i in range(14):
        e(('l', f"ds_read_b128 {vr(8+4*i,4)}, v{5 + (i & 1)} offset:{i*4096}", ("rd", i)))
    for i in range(14):
        e(('wl', ("rd", i)))
        e(f"buffer_store_dwordx4 {vr(8+4*i,4)}, v4, s[20:23], s33 offen{STF}")
        if i < 13: e(f"s_add_u32 s33, s33, {32*URS}")
    e(srd(52, 44, S * 2)); e(srd(56, 46, D * 2))
    e(["v_lshlrev_b32 v3, 7, v1", "buffer_load_dword v2, v3, s[52:55], 0 offen", "buffer_load_dword v7, v3, s[56:59], 0 offen"])
    e(stamp(6))
    e(stamp_out(0))
    e(f"{name}_end:")
    e("s_endpgm")
    return a

def gen_k2(name):
    a = Asm(); e = Em(a)
    NSLOT = OPT["NSLOT2"]; ZD = OPT["ZD"]
    CB = NSLOT * 8192
    HSZ = 4 * 4160
    CH = HSZ + 4608
    XCH = (CB + 2 * CH + 16383) // 16384 * 16384
    e(lines(f"""
    s_cmp_ge_u32 s2, 256
    s_cbranch_scc1 {name}_end
    s_load_dwordx4 s[4:7], s[0:1], 64
    s_load_dwordx4 s[8:11], s[0:1], 32
    s_load_dwordx2 s[28:29], s[0:1], 104
    s_load_dwordx2 s[62:63], s[0:1], 0
    s_load_dwordx2 s[64:65], s[0:1], 80
    v_lshrrev_b32 v1, 6, v0
    v_readfirstlane_b32 s24, v1
    v_and_b32 v1, 63, v0
    s_and_b32 s30, s2, 7
    s_lshr_b32 s31, s2, 3
    s_cmp_ge_u32 s2, 224
    s_cbranch_scc1 {name}_pf
    s_and_b32 s32, s30, 1
    s_mul_i32 s32, s32, 28
    s_add_u32 s32, s32, s31
    s_lshr_b32 s25, s32, 3
    s_and_b32 s32, s32, 7
    s_lshr_b32 s26, s30, 1
    s_lshl_b32 s26, s26, 3
    s_add_u32 s26, s26, s32
    s_cmp_ge_u32 s24, 4
    s_cbranch_scc1 {name}_conv
    s_setprio 1
    s_lshl_b32 s27, s25, 2
    s_add_u32 s27, s27, s24
    v_lshlrev_b32 v4, 4, v1
    s_lshl_b32 s35, s27, 17
    s_add_u32 s35, s35, {Z2F}
    s_waitcnt lgkmcnt(0)
    """))
    e(stamp(0))
    e(srd(20, 28, WS_SIZE)); e(srd(16, 6, S * 2))
    ZB = 64
    def zreg(k): return ZB + 4 * (k % (ZD + 1))
    def zload(k):
        r = []
        if k % 4 == 0: r.append(f"s_add_u32 s33, s35, {k*1024}")
        r.append(('v', f"buffer_load_dwordx4 {vr(zreg(k),4)}, v4, s[20:23], s33 offen offset:{(k%4)*1024}", ("z", k)))
        return r
    for k in range(ZD): e(zload(k))
    Z1R = 192
    e(lines(f"s_lshl_b32 s36, s27, 6\ns_lshl_b32 s37, s26, 1\ns_add_u32 s36, s36, s37\ns_lshl_b32 s36, s36, 11"))
    for i in range(4):
        e(('v', f"buffer_load_dwordx4 {vr(Z1R+4*i,4)}, v4, s[20:23], s36 offen offset:{i*1024}", "z1"))
    e(lines(f"v_and_b32 v11, 31, v1\nv_lshlrev_b32 v11, 1, v11\ns_lshl_b32 s36, s26, 7"))
    for ts in range(2):
        e(('v', f"buffer_load_ushort v{208+2*ts}, v11, s[16:19], s36 offen offset:{ts*64}", "z1"))
    e(lines(f"""
    v_and_b32 v11, 31, v1
    v_lshrrev_b32 v12, 5, v1
    v_bfe_u32 v13, v1, 1, 3
    v_xor_b32 v13, v13, v12
    v_lshlrev_b32 v14, 7, v11
    v_lshl_add_u32 v5, v13, 4, v14
    v_xor_b32 v6, 32, v5
    v_xor_b32 v7, 64, v5
    v_xor_b32 v8, 96, v5
    """))
    for r in range(16, 48): e(f"v_mov_b32 v{r}, 0")
    WF = 160
    Z1R = 192
    def wreads(k):
        st, ks = k >> 2, k & 3
        return [('l', f"ds_read_b128 {vr(WF+8*(k%3)+4*ts,4)}, v{5+ks} offset:{(st % NSLOT)*8192 + ts*4096}", ("w", k)) for ts in range(2)]
    e("s_barrier"); e(stamp(1))
    e(wreads(0)); e(wreads(1))
    for k in range(128):
        if k + 2 < 128:
            if (k + 2) % 4 == 0: e("s_barrier")
            e(wreads(k + 2))
        if k + ZD < 128: e(zload(k + ZD))
        e(('wvl', ("z", k), ("w", k)))
        for ts in range(2):
            if not OPT.get("x2_nomfma"): e(f"v_mfma_f32_32x32x16_bf16 {vr(16+16*ts,16)}, {vr(zreg(k),4)}, {vr(WF+8*(k%3)+4*ts,4)}, {vr(16+16*ts,16)}")
    e(stamp(2))
    e("s_waitcnt vmcnt(0)")
    e(["v_lshlrev_b32 v208, 16, v208", "v_lshlrev_b32 v210, 16, v210"])
    T = 64
    for q in range(16):
        e([f"v_lshlrev_b32 v{T+2*q}, 16, v{Z1R+q}", f"v_and_b32 v{T+2*q+1}, 0xffff0000, v{Z1R+q}"])
    e(lines(f"s_mul_i32 s33, s26, 112\ns_lshl_b32 s37, s27, 1\ns_add_u32 s33, s33, s37\ns_lshl_b32 s33, s33, 10\ns_add_u32 s33, s33, {PF}\ns_add_u32 s34, s33, {56*1024}"))
    for ts in range(2):
        for q in range(8):
            e(f"v_pk_add_f32 {vr(16+16*ts+2*q,2)}, {vr(16+16*ts+2*q,2)}, {vr(208+2*ts,2)} op_sel_hi:[1,0]")
        for q in range(8):
            e(f"v_pk_mul_f32 {vr(T+16*ts+2*q,2)}, {vr(T+16*ts+2*q,2)}, {vr(16+16*ts+2*q,2)}")
        P = 96 + 8 * ts
        for q in range(8):
            e(f"v_cvt_pk_bf16_f32 v{P+q}, v{T+16*ts+2*q}, v{T+16*ts+2*q+1}")
        for k2 in range(2):
            e(f"v_permlane32_swap_b32 v{P+4*k2}, v{P+4*k2+2}")
            e(f"v_permlane32_swap_b32 v{P+4*k2+1}, v{P+4*k2+3}")
        for k2 in range(2):
            e(f"buffer_store_dwordx4 {vr(P+4*k2,4)}, v4, s[20:23], s{33+ts} offen offset:{k2*1024}")
    for i in range(3, 7): e(stamp(i))
    e(stamp_out(1))
    e("s_endpgm")
    e = Em(a)
    e(lines(f"""
    {name}_conv:
    s_sub_u32 s38, s24, 4
    s_lshr_b32 s39, s38, 1
    s_and_b32 s27, s38, 1
    s_lshl_b32 s40, s2, 1
    s_add_u32 s40, s40, s39
    s_mul_i32 s41, s39, {CH}
    s_add_u32 s41, s41, {CB}
    s_add_u32 s42, s41, {HSZ}
    s_lshl_b32 s33, s40, 12
    v_lshrrev_b32 v11, 3, v1
    v_and_b32 v12, 7, v1
    v_lshrrev_b32 v13, 4, v1
    v_lshlrev_b32 v14, 12, v11
    v_xor_b32 v15, v12, v13
    v_lshl_add_u32 v54, v15, 4, v14
    v_xor_b32 v15, 4, v15
    v_lshl_add_u32 v55, v15, 4, v14
    v_add_u32 v55, 0x8000, v55
    s_lshl_b32 s43, s26, 2
    s_add_u32 s43, s43, s38
    s_lshl_b32 s43, s43, 16
    s_lshl_b32 s44, s38, 11
    s_waitcnt lgkmcnt(0)
    s_add_u32 s8, s8, s33
    s_addc_u32 s9, s9, 0
    """))
    for i in range(8): e(stamp(i))
    e(srd(48, 4, S * S * 2))
    def wdma(st):
        r = [f"s_add_u32 s33, s43, {st*128}"]
        for i2 in range(2):
            r += [f"s_add_u32 m0, s44, {(st % NSLOT)*8192 + i2*1024}",
                  ('v', f"buffer_load_dwordx4 v{54+i2}, s[48:51], s33 offen lds", ("w", st))]
        return r
    for st in range(2): e(wdma(st))
    e(srd(12, 8, 4096)); e(srd(16, 10, D * 2)); e(srd(20, 28, WS_SIZE))
    e(lines(f"""
    v_lshlrev_b32 v2, 4, v1
    s_lshl_b32 s34, s27, 11
    v_add_u32 v3, s34, v2
    v_and_b32 v4, 1, v1
    v_lshlrev_b32 v4, 4, v4
    v_add_u32 v5, {(-32) & 0xffffffff}, v4
    v_add_u32 v6, {(-16) & 0xffffffff}, v4
    """))
    HA = 64
    for it in range(2):
        e(('v', f"buffer_load_dwordx4 {vr(HA+8*it,4)}, v3, s[12:15], 0 offen offset:{it*1024}", "h"))
        e(('v', f"buffer_load_dwordx2 {vr(HA+8*it+4,2)}, v3, s[12:15], 0 offen offset:{it*1024+16}", "h"))
    e(('v', f"buffer_load_dwordx4 {vr(HA+16,4)}, v5, s[12:15], 0 offen", "h"))
    e(('v', f"buffer_load_dwordx2 {vr(HA+20,2)}, v6, s[12:15], 0 offen", "h"))
    e(lines(f"s_mul_i32 s35, s40, {URS}\ns_add_u32 s35, s35, {UR}\ns_add_u32 s35, s35, s34\ns_add_u32 m0, s42, s34"))
    e(('v', f"buffer_load_dwordx4 v2, s[20:23], s35 offen lds", "h"))
    e(('v', f"buffer_load_dwordx4 v2, s[20:23], s35 offen offset:1024 lds", "h"))
    e(lines(f"s_lshl_b32 s35, s40, 1\nv_mov_b32 v7, s35"))
    e(('v', f"buffer_load_ushort v60, v7, s[16:19], 0 offen", "h"))
    for st in range(2, NSLOT): e(wdma(st))
    e(lines(f"v_lshlrev_b32 v8, 3, v1\nv_add_u32 v8, s42, v8\nv_mov_b32 v10, 0\nv_mov_b32 v11, 0\nds_write_b64 v8, v[10:11] offset:4096"))
    for r in range(16, 48): e(f"v_mov_b32 v{r}, 0")
    e(lines(f"""
    v_and_b32 v9, 15, v1
    v_lshrrev_b32 v10, 4, v1
    v_add_u32 v11, 1, v9
    v_and_b32 v12, 3, v11
    v_mul_u32_u24 v12, 4160, v12
    v_and_b32 v11, 0x1c, v11
    v_lshl_add_u32 v12, v11, 1, v12
    v_lshl_add_u32 v12, v10, 4, v12
    s_lshl_b32 s35, s27, 8
    s_add_u32 s36, s41, s35
    v_add_u32 v50, s36, v12
    v_lshlrev_b32 v12, 5, v9
    v_lshlrev_b32 v13, 4, v10
    v_sub_u32 v13, v13, v12
    s_add_u32 s36, s42, s35
    s_add_u32 s36, s36, 480
    v_add_u32 v51, s36, v13
    s_add_u32 s36, s41, 32
    v_add_u32 v52, s36, v3
    v_add_u32 v53, s41, v4
    """))
    nb = [0]
    def bar():
        s_ = nb[0]
        e(('wv', ("w", s_)))
        e("s_barrier")
        nx = s_ - 2 + NSLOT
        if s_ >= 2 and nx < 32: e(wdma(nx))
        if s_ == OPT.get("k2_pfat", 30) and OPT["k2_k3pf"]:
            e(srd(52, 64, FH * D * 2)); e(srd(56, 62, S * D * 2))
            e(lines(f"""
            v_lshlrev_b32 v56, 7, v1
            s_lshl_b32 s33, s31, 2
            s_add_u32 s33, s33, s38
            s_lshl_b32 s45, s33, 13
            s_mul_i32 s46, s30, {256*896}
            s_lshl_b32 s33, s33, 11
            s_add_u32 s46, s46, s33
            v_and_b32 v57, 0x780, v56
            """))
            e(('v', "buffer_load_dword v58, v56, s[52:55], s45 offen", "pf"))
            e(('v', "buffer_load_dword v59, v57, s[56:59], s46 offen", "pf"))
        nb[0] += 1
    bar(); bar()
    bar()
    for it in range(3):
        A = HA + 8 * it
        O = 96 + 12 * it
        for q in range(4):
            e(f"v_alignbit_b32 v{O+q}, v{A+q+1}, v{A+q}, 16")
            e(f"v_mov_b32 v{O+4+q}, v{A+q+1}")
            e(f"v_alignbit_b32 v{O+8+q}, v{A+q+2}, v{A+q+1}, 16")
        ad = 52 if it < 2 else 53
        off = it * 1024 if it < 2 else 0
        e(f"ds_write_b128 v{ad}, {vr(A,4)} offset:{off}")
        for c in range(1, 4):
            e(f"ds_write_b128 v{ad}, {vr(O+4*(c-1),4)} offset:{off + c*4160}")
        if it == 1: bar()
    e("s_waitcnt lgkmcnt(0)")
    bar()
    e(stamp(1))
    FBc = [64, 128]
    def loads(r):
        b = FBc[r & 1]
        lst = []
        for c in range(8):
            lst.append(f"ds_read_b128 {vr(b+32+4*c,4)}, v51 offset:{512*(7-c) + 64*r}")
            lst.append(f"ds_read_b64 {vr(b+4*c,2)}, v50 offset:{64*(8*c+r)}")
            lst.append(f"ds_read_b64 {vr(b+4*c+2,2)}, v50 offset:{64*(8*c+r)+8}")
        return lst
    for l in loads(0)[:12]: e(l)
    e("s_waitcnt lgkmcnt(0)")
    for l in loads(0)[12:]: e(l)
    e("s_waitcnt lgkmcnt(0)")
    bar()
    cnt = 0
    PER = 6
    for r in range(4):
        b = FBc[r & 1]
        nxt = loads(r + 1) if r < 3 else []
        mm = [(c, q) for c in range(8) for q in range(8 - c)]
        for i, (c, q) in enumerate(mm):
            if not OPT.get("x2_noconv"):
                e(f"v_mfma_f32_16x16x32_bf16 {vr(16+4*(c+q),4)}, {vr(b+4*c,4)}, {vr(b+32+4*q,4)}, {vr(16+4*(c+q),4)}")
                if i < len(nxt): e(nxt[i])
            cnt += 1
            if cnt % PER == 0 and cnt < 144:
                e("s_waitcnt lgkmcnt(0)")
                bar()
    e(stamp(2))
    e(lines(f"""
    s_lshl_b32 s35, s38, 12
    s_add_u32 s35, s35, {XCH}
    v_add_u32 v52, s35, v2
    s_xor_b32 s35, s35, 4096
    v_add_u32 v53, s35, v2
    s_cmp_eq_u32 s27, 0
    s_cbranch_scc1 {name}_h0
    """))
    for t in range(16):
        e(lines(f"v_mov_b32 v{64+t}, v{16+t}\nv_mov_b32 v{16+t}, v{32+t}\nv_mov_b32 v{32+t}, v{64+t}"))
    e(f"{name}_h0:")
    e("s_nop 7")
    for t in range(4):
        e(f"ds_write_b128 v52, {vr(32+4*t,4)} offset:{t*1024}")
    e("s_waitcnt lgkmcnt(0)")
    bar()
    for t in range(4):
        e(f"ds_read_b128 {vr(64+4*t,4)}, v53 offset:{t*1024}")
    e(lines(f"""
    v_lshlrev_b32 v12, 5, v9
    v_lshl_add_u32 v12, v10, 3, v12
    s_lshl_b32 s35, s27, 11
    s_sub_u32 s36, s42, s35
    s_add_u32 s36, s36, {4088 - 3*512}
    v_sub_u32 v13, s36, v12
    """))
    for t in range(4):
        e(f"ds_read_b64 {vr(80+2*t,2)}, v13 offset:{(3-t)*512}")
    assert nb[0] <= 32, nb[0]
    while nb[0] < 32: bar()
    e(lines(f"v_lshlrev_b32 v60, 16, v60\ns_lshl_b32 s36, s40, 12\ns_add_u32 s36, s36, s35\ns_add_u32 s36, s36, {YT}\ns_waitcnt lgkmcnt(0)"))
    for t in range(4):
        Y = 16 + 4 * t
        U = 96
        e(lines(f"""
        v_pk_add_f32 {vr(Y,2)}, {vr(Y,2)}, {vr(64+4*t,2)}
        v_pk_add_f32 {vr(Y+2,2)}, {vr(Y+2,2)}, {vr(66+4*t,2)}
        v_and_b32 v{U}, 0xffff0000, v{81+2*t}
        v_lshlrev_b32 v{U+1}, 16, v{81+2*t}
        v_and_b32 v{U+2}, 0xffff0000, v{80+2*t}
        v_lshlrev_b32 v{U+3}, 16, v{80+2*t}
        v_fmac_f32 v{Y}, v{U}, v60
        v_fmac_f32 v{Y+1}, v{U+1}, v60
        v_fmac_f32 v{Y+2}, v{U+2}, v60
        v_fmac_f32 v{Y+3}, v{U+3}, v60
        v_cvt_pk_bf16_f32 v{100+2*t}, v{Y}, v{Y+1}
        v_cvt_pk_bf16_f32 v{101+2*t}, v{Y+2}, v{Y+3}
        buffer_store_dwordx2 {vr(100+2*t,2)}, v12, s[20:23], s36 offen offset:{t*512}
        """))
    e(stamp_out(1))
    e("s_endpgm")
    e = Em(a)
    e(lines(f"""
    {name}_pf:
    s_and_b32 s32, s30, 1
    s_mul_i32 s32, s32, 3
    s_sub_u32 s33, s31, 28
    s_add_u32 s32, s32, s33
    s_lshl_b32 s32, s32, 2
    s_and_b32 s33, s24, 3
    s_add_u32 s32, s32, s33
    s_lshl_b32 s32, s32, 17
    s_lshr_b32 s33, s24, 2
    s_lshl_b32 s33, s33, 13
    s_add_u32 s32, s32, s33
    s_add_u32 s32, s32, {Z2F}
    v_lshlrev_b32 v2, 7, v1
    s_waitcnt lgkmcnt(0)
    """))
    for i in range(8): e(stamp(i))
    e(srd(20, 28, WS_SIZE))
    if OPT["k2_zpf"]:
        for i in range(8):
            e(f"buffer_load_dword v{8+i}, v2, s[20:23], s32 offen")
            e(f"s_add_u32 s32, s32, 16384")
    e(stamp_out(1))
    e(f"{name}_end:")
    e("s_endpgm")
    return a, XCH + 4 * 4096

def gen_k3(name):
    a = Asm(); e = Em(a)
    WSZ = 28672
    YB = 4 * WSZ
    e(lines(f"""
    s_cmp_ge_u32 s2, 224
    s_cbranch_scc1 {name}_end
    s_load_dwordx2 s[4:5], s[0:1], 0
    s_load_dwordx4 s[8:11], s[0:1], 80
    s_load_dwordx2 s[28:29], s[0:1], 104
    v_lshrrev_b32 v1, 6, v0
    v_readfirstlane_b32 s24, v1
    v_and_b32 v1, 63, v0
    s_and_b32 s30, s2, 7
    s_lshr_b32 s31, s2, 3
    s_mul_i32 s32, s31, 37
    s_lshr_b32 s32, s32, 8
    s_mul_i32 s33, s32, 7
    s_sub_u32 s26, s31, s33
    s_lshl_b32 s25, s30, 2
    s_add_u32 s25, s25, s32
    v_lshrrev_b32 v11, 3, v1
    v_and_b32 v12, 7, v1
    v_bfe_u32 v13, v1, 4, 1
    v_mul_u32_u24 v14, 896, v11
    v_lshlrev_b32 v13, 2, v13
    v_xor_b32 v15, v12, v13
    v_lshl_add_u32 v2, v15, 4, v14
    v_lshlrev_b32 v4, 4, v1
    s_lshr_b32 s38, s24, 1
    s_and_b32 s39, s24, 1
    s_mul_i32 s34, s24, {224*896}
    s_lshl_b32 s35, s26, 7
    s_add_u32 s34, s34, s35
    s_lshl_b32 s44, s25, 1
    s_add_u32 s44, s44, s39
    s_xor_b32 s49, s44, 1
    s_mul_i32 s36, s24, {14*1024}
    s_add_u32 s36, s36, {PF}
    s_mul_i32 s35, s44, {56*1024}
    s_add_u32 s35, s35, s36
    s_mul_i32 s49, s49, {56*1024}
    s_add_u32 s36, s49, s36
    s_mul_i32 s37, s24, {WSZ}
    s_waitcnt lgkmcnt(0)
    """))
    e(stamp(0))
    e(srd(12, 8, FH * D * 2)); e(srd(20, 28, WS_SIZE))
    PB = 80
    def issue(i):
        r = []
        for i2 in range(2):
            r += [f"s_add_u32 s33, s34, {(16*i+8*i2)*896}", f"s_add_u32 m0, s37, {i*2048 + i2*1024}",
                  ('v', f"buffer_load_dwordx4 v2, s[12:15], s33 offen lds", i)]
        for ts in range(2):
            r += [f"s_add_u32 s33, s{35+ts}, {i*1024}",
                  ('v', f"buffer_load_dwordx4 {vr(PB+8*i+4*ts,4)}, v4, s[20:23], s33 offen", i)]
        return r
    AHEAD = OPT.get("k3_ahead", 4)
    for i in range(AHEAD): e(issue(i))
    e(srd(16, 10, S * D * 2)); e(srd(40, 4, S * D * 2))
    e(lines(TR_ADDR + f"""
    v_add_u32 v9, s37, v14
    s_lshl_b32 s33, s38, 6
    v_xor_b32 v9, s33, v9
    v_xor_b32 v10, 64, v9
    """))
    for r in range(16, 80): e(f"v_mov_b32 v{r}, 0")
    WF = 192
    def rd(i):
        b = WF + 8 * (i & 1)
        return [('l', f"ds_read_b64_tr_b16 {vr(b+4*sub+2*h,2)}, v{9+sub} offset:{i*2048 + h*512}", ("w", i)) for sub in range(2) for h in range(2)]
    XR, ST, YR = 208, 216, 220
    ex = lines(f"""
    v_and_b32 v11, 31, v1
    v_mul_u32_u24 v12, 896, v11
    v_lshrrev_b32 v13, 5, v1
    v_lshl_add_u32 v3, v13, 4, v12
    s_mul_i32 s45, s44, {32*896}
    s_lshl_b32 s46, s26, 1
    s_add_u32 s46, s46, s38
    s_lshl_b32 s47, s46, 6
    s_add_u32 s45, s45, s47
    """) + [('v', f"buffer_load_dwordx4 {vr(XR,4)}, v3, s[40:43], s45 offen", "ex"),
            ('v', f"buffer_load_dwordx4 {vr(XR+4,4)}, v3, s[40:43], s45 offen offset:32", "ex")] + lines(f"""
    v_lshlrev_b32 v12, 3, v11
    s_lshl_b32 s47, s44, 8
    s_add_u32 s47, s47, {XST}
    """) + [('v', f"buffer_load_dwordx2 {vr(ST,2)}, v12, s[20:23], s47 offen", "ex")] + lines(f"""
    v_lshrrev_b32 v12, 2, v1
    v_lshlrev_b32 v12, 12, v12
    v_and_b32 v13, 3, v1
    v_lshl_add_u32 v12, v13, 4, v12
    s_lshl_b32 s47, s46, 17
    s_lshl_b32 s48, s44, 6
    s_add_u32 s47, s47, s48
    s_add_u32 s47, s47, {YT}
    s_lshl_b32 s48, s24, 11
    s_add_u32 s48, s48, {YB}
    s_mov_b32 m0, s48
    """) + [('v', "buffer_load_dwordx4 v12, s[20:23], s47 offen lds", "ex"),
            "s_add_u32 s47, s47, 0x10000", "s_add_u32 m0, s48, 1024",
            ('v', "buffer_load_dwordx4 v12, s[20:23], s47 offen lds", "ex")]
    e(('wv', 0)); e(stamp(1))
    e(rd(0))
    for i in range(14):
        if i + AHEAD < 14: e(issue(i + AHEAD))
        if i + AHEAD == 14: e(ex)
        if i + 1 < 14:
            e(('wv', i + 1)); e(rd(i + 1))
        e(('wl', ("w", i)))
        b = WF + 8 * (i & 1)
        for sub in range(2):
            for ts in range(2):
                acc = 16 + 16 * (2 * sub + ts)
                e(f"v_mfma_f32_32x32x16_bf16 {vr(acc,16)}, {vr(b+4*sub,4)}, {vr(PB+8*i+4*ts,4)}, {vr(acc,16)}")
    e(stamp(2))
    e(lines(f"""
    v_add_u32 v5, s37, v4
    s_xor_b32 s33, s24, 1
    s_mul_i32 s33, s33, {WSZ}
    v_add_u32 v6, s33, v4
    s_xor_b32 s33, s24, 2
    s_mul_i32 s33, s33, {WSZ}
    v_add_u32 v7, s33, v4
    s_xor_b32 s33, s24, 3
    s_mul_i32 s33, s33, {WSZ}
    v_add_u32 v8, s33, v4
    v_lshrrev_b32 v12, 5, v1
    v_bfe_u32 v13, v1, 2, 2
    v_lshl_add_u32 v14, v12, 2, v13
    v_lshlrev_b32 v14, 6, v14
    v_bfe_u32 v15, v1, 4, 1
    v_lshl_add_u32 v14, v15, 5, v14
    v_and_b32 v15, 3, v1
    v_lshl_add_u32 v14, v15, 3, v14
    v_add_u32 v14, s48, v14
    """))
    for j in range(1, 4):
        for g in range(4):
            e(('l', f"ds_write_b128 v5, {vr(16+16*j+4*g,4)} offset:{(j-1)*4096+g*1024}", "rw"))
    e(('wv', "ex"))
    for g in range(4):
        e(('l', f"ds_read_b64_tr_b16 {vr(YR+2*g,2)}, v14 offset:{g*512}", "y"))
    for k2 in range(2):
        e(f"v_permlane32_swap_b32 v{XR+4*k2}, v{XR+4*k2+2}")
        e(f"v_permlane32_swap_b32 v{XR+4*k2+1}, v{XR+4*k2+3}")
    X, Y, T = 128, 144, 160
    for q in range(8):
        e([f"v_lshlrev_b32 v{X+2*q}, 16, v{XR+q}", f"v_and_b32 v{X+2*q+1}, 0xffff0000, v{XR+q}"])
    e([('wl', "y"), "s_barrier"])
    for j in range(1, 4):
        for g in range(4):
            e(('l', f"ds_read_b128 {vr(80+16*(j-1)+4*g,4)}, v{5+j} offset:{(j-1)*4096+g*1024}", ("rr", j)))
    e(lines(f"v_mov_b32 v218, v{ST+1}\nv_mov_b32 v176, {f32(-math.log2(math.e))}\nv_mov_b32 v178, 1.0"))
    for q in range(8):
        e([f"v_lshlrev_b32 v{Y+2*q}, 16, v{YR+q}", f"v_and_b32 v{Y+2*q+1}, 0xffff0000, v{YR+q}"])
    for q in range(8): e(f"v_pk_add_f32 {vr(T+2*q,2)}, {vr(X+2*q,2)}, {vr(ST,2)} op_sel_hi:[1,0] neg_lo:[0,1] neg_hi:[0,1]")
    for q in range(8): e(f"v_pk_mul_f32 {vr(T+2*q,2)}, {vr(T+2*q,2)}, {vr(218,2)} op_sel_hi:[1,0]")
    for q in range(8): e(f"v_pk_mul_f32 {vr(Y+2*q,2)}, {vr(T+2*q,2)}, {vr(Y+2*q,2)}")
    O = 16
    for j in range(1, 4):
        e(('wl', ("rr", j)))
        for q in range(8):
            e(f"v_pk_add_f32 {vr(O+2*q,2)}, {vr(O+2*q,2)}, {vr(80+16*(j-1)+2*q,2)}")
    for q in range(8): e(f"v_pk_mul_f32 {vr(T+2*q,2)}, {vr(O+2*q,2)}, {vr(176,2)} op_sel_hi:[1,0]")
    for q in range(16): e(f"v_exp_f32 v{T+q}, v{T+q}")
    for q in range(8): e(f"v_pk_mul_f32 {vr(O+2*q,2)}, {vr(O+2*q,2)}, {vr(Y+2*q,2)}")
    for q in range(8): e(f"v_pk_add_f32 {vr(T+2*q,2)}, {vr(T+2*q,2)}, {vr(178,2)} op_sel_hi:[1,0]")
    for q in range(16): e(f"v_rcp_f32 v{T+q}, v{T+q}")
    for q in range(8): e(f"v_pk_fma_f32 {vr(T+2*q,2)}, {vr(T+2*q,2)}, {vr(O+2*q,2)}, {vr(X+2*q,2)}")
    P = 96
    for q in range(8): e(f"v_cvt_pk_bf16_f32 v{P+q}, v{T+2*q}, v{T+2*q+1}")
    for k2 in range(2):
        e(f"v_permlane32_swap_b32 v{P+4*k2}, v{P+4*k2+2}")
        e(f"v_permlane32_swap_b32 v{P+4*k2+1}, v{P+4*k2+3}")
    for k2 in range(2):
        e(f"buffer_store_dwordx4 {vr(P+4*k2,4)}, v3, s[16:19], s45 offen offset:{k2*32}")
    for i in range(3, 7): e(stamp(i))
    e(stamp_out(2))
    e(f"{name}_end:")
    e("s_endpgm")
    return a, YB + 4 * 2048

HEADER = open("recurrent_scan__ssm_conv_h3__mixer_gmlp__prompt.s.ref").read().split("; Override")[0]

def build(kernels, path):
    out = HEADER
    for (name, a, grid, block, lds, vg, acc) in kernels:
        out += f"; @launch kernel={name} grid=({grid},1,1) block=({block},1,1) lds={lds}\n"
    out += '.amdgcn_target "amdgcn-amd-amdhsa--gfx950"\n.text\n'
    for (name, a, grid, block, lds, vg, acc) in kernels:
        out += kernel_header(name) + a.text()
    out += '.section .rodata,"a"\n'
    for (name, a, grid, block, lds, vg, acc) in kernels:
        out += kernel_desc(name, vg, accum=acc)
    open(path, "w").write(out)

if __name__ == "__main__":
    args = sys.argv[1:]
    if "--diag" in args:
        DIAG = True
        args.remove("--diag")
    for x in list(args):
        if "=" in x:
            k, v = x.split("=")
            OPT[k] = float(v) if "." in v else int(v)
            args.remove(x)
    k2, lds2 = gen_k2("k2_kernel")
    k3, lds3 = gen_k3("k3_kernel")
    ks = [("k1_kernel", gen_k1("k1_kernel"), 256, 256, 163840, 368, 256),
          ("k2_kernel", k2, 256, 512, lds2, 224, None),
          ("k3_kernel", k3, 224, 256, lds3, 228, None)]
    build(ks, args[0] if args else "out.s")
```

```python
import sys, struct, math
from asmlib import *

S, D, F, FH = 2048, 448, 1792, 896
Z1F = 0x0000000
Z2F = 0x0400000
PF  = 0x0800000
UR  = 0x1000000
URS = 4096 + 128
YT  = 0x1200000
STATS = 0x1400000
XST = 0x1500000
TSB = 0x1510000
WS_SIZE = 0x1580000
DIAG = False
OPT = dict(k1_touch=0, k1_wsp=1, k2_zpf=1, k2_k3pf=1, ZD=8, NSLOT2=5, k1_wout=1, k1_stf=1, k1_rot=1, k3_pf=1)

def f32(x):
    return "0x%08x" % struct.unpack("<I", struct.pack("<f", x))[0]

class Em:
    def __init__(self, a):
        self.a = a
        self.v = []
        self.l = []
    def _cnt(self, lst, tag, mx):
        tags = tag if isinstance(tag, (list, set)) else [tag]
        idx = [i for i, t in enumerate(lst) if t in tags]
        if not idx: return None
        n = len(lst) - 1 - max(idx)
        return min(n, mx)
    def __call__(self, it):
        if isinstance(it, str):
            self.a(it)
        elif isinstance(it, list):
            for x in it: self(x)
        elif it[0] == 'v':
            self.a(it[1]); self.v.append(it[2])
        elif it[0] == 'l':
            self.a(it[1]); self.l.append(it[2])
        elif it[0] == 'wv':
            n = self._cnt(self.v, it[1], 63)
            if n is not None: self.a(f"s_waitcnt vmcnt({n})")
        elif it[0] == 'wl':
            n = self._cnt(self.l, it[1], 15)
            if n is not None: self.a(f"s_waitcnt lgkmcnt({n})")
        elif it[0] == 'wvl':
            n = self._cnt(self.v, it[1], 63); m = self._cnt(self.l, it[2], 15)
            s = "s_waitcnt"
            if n is None and m is None: return
            if n is not None: s += f" vmcnt({n})"
            if m is not None: s += f" lgkmcnt({m})"
            self.a(s)
        else:
            raise ValueError(it)

def lines(s):
    return [l.strip() for l in s.strip("\n").split("\n") if l.strip()]

def merge(A, B, ratio):
    out = []
    bi = 0
    acc = 0.0
    for it in A:
        out.append(it)
        txt = it if isinstance(it, str) else ""
        if txt.startswith("v_mfma"):
            acc += ratio
            while acc >= 1.0 and bi < len(B):
                out.append(B[bi]); bi += 1; acc -= 1.0
    out += B[bi:]
    return out

def stamp(i):
    if not DIAG: return []
    r = [f"s_memrealtime s[{70+2*i}:{71+2*i}]"]
    if i == 0: r.append("s_memtime s[86:87]")
    if i == 7: r.append("s_memtime s[88:89]")
    return r
def stamp_out(kidx, srdreg=20, wavereg=24):
    if not DIAG: return []
    r = ["s_waitcnt vmcnt(0)"] + stamp(7)
    r += lines(f"""
    s_waitcnt lgkmcnt(0)
    s_mov_b64 exec, -1
    s_lshl_b32 s68, s2, 3
    s_add_u32 s68, s68, s{wavereg}
    s_lshl_b32 s68, s68, 6
    s_add_u32 s68, s68, {TSB + kidx*0x20000}
    v_mov_b32 v1, 0
    """)
    r.append("s_getreg_b32 s90, hwreg(HW_REG_XCC_ID)")
    for i in range(11):
        r.append(f"v_mov_b32 v2, s{70+2*i}")
        r.append(f"buffer_store_dword v2, v1, s[{srdreg}:{srdreg+3}], s68 offen offset:{4*i}")
    return r

def srd(dst, ptr, size):
    return lines(f"""
    s_mov_b32 s{dst}, s{ptr}
    s_and_b32 s{dst+1}, s{ptr+1}, 0xffff
    s_mov_b32 s{dst+2}, {size}
    s_mov_b32 s{dst+3}, 0x20000
    """)

def rbf16(dst, src):
    return [f"v_cvt_pk_bf16_f32 v{dst}, v{src}, v{src}", f"v_and_b32 v{dst}, 0xffff0000, v{dst}"]

def halfsum(v, t):
    return [f"v_mov_b32 v{t}, v{v}", f"v_permlane32_swap_b32 v{v}, v{t}", f"v_add_f32 v{v}, v{v}, v{t}"]

def ln_stats(vsum, vsq, n, vm, vsd, vr_):
    t = vsd
    r = [f"v_mul_f32 v{vsum}, {f32(1.0/n)}, v{vsum}",
         f"v_mul_f32 v{vsq}, {f32(1.0/n)}, v{vsq}",
         f"v_fma_f32 v{t}, -v{vsum}, v{vsum}, v{vsq}",
         f"v_max_f32 v{t}, 0, v{t}"]
    r += rbf16(vm, vsum) + rbf16(t, t)
    r += [f"v_add_f32 v{t}, {f32(1e-5)}, v{t}"] + rbf16(t, t)
    r += [f"v_sqrt_f32 v{t}, v{t}"] + rbf16(t, t)
    r += [f"v_rcp_f32 v{vr_}, v{t}"]
    return r

TR_ADDR = """
    v_lshrrev_b32 v12, 5, v1
    v_bfe_u32 v13, v1, 2, 2
    v_lshl_add_u32 v14, v12, 3, v13
    v_lshlrev_b32 v14, 7, v14
    v_bfe_u32 v15, v1, 4, 1
    v_lshl_add_u32 v14, v15, 5, v14
    v_and_b32 v15, 3, v1
    v_lshl_add_u32 v14, v15, 3, v14
    v_bfe_u32 v15, v1, 3, 1
    v_lshl_add_u32 v14, v15, 6, v14
"""

def gen_k1(name):
    a = Asm(); e = Em(a)
    STF = ["", " sc1", " nt", " sc0 sc1"][OPT.get("k1_stf", 0)]
    WR = 114688
    CSP = WR + 5 * 8192
    e(lines(f"""
    s_cmp_ge_u32 s2, 256
    s_cbranch_scc1 {name}_end
    s_load_dwordx2 s[62:63], s[0:1], 64
    s_load_dwordx2 s[64:65], s[0:1], 80
    s_load_dwordx2 s[66:67], s[0:1], 32
    s_cmp_ge_u32 s2, 224
    s_cbranch_scc1 {name}_side
    s_load_dwordx2 s[4:5], s[0:1], 0
    s_load_dwordx2 s[6:7], s[0:1], 56
    s_load_dwordx4 s[8:11], s[0:1], 96
    s_memrealtime s[60:61]
    v_lshrrev_b32 v1, 6, v0
    v_readfirstlane_b32 s24, v1
    v_and_b32 v1, 63, v0
    s_and_b32 s28, s2, 7
    s_lshr_b32 s29, s2, 3
    s_mul_i32 s30, s29, 37
    s_lshr_b32 s30, s30, 8
    s_mul_i32 s31, s30, 7
    s_sub_u32 s31, s29, s31
    s_lshr_b32 s25, s28, 1
    s_lshl_b32 s25, s25, 2
    s_add_u32 s25, s25, s30
    s_and_b32 s26, s28, 1
    s_mul_i32 s26, s26, 7
    s_add_u32 s26, s26, s31
    v_lshrrev_b32 v11, 3, v1
    v_and_b32 v12, 7, v1
    v_lshrrev_b32 v13, 4, v1
    v_mul_u32_u24 v14, 896, v11
    v_xor_b32 v15, v12, v13
    v_lshl_add_u32 v2, v15, 4, v14
    v_xor_b32 v15, 4, v15
    v_lshl_add_u32 v3, v15, 4, v14
    v_add_u32 v3, {8*896}, v3
    v_mul_u32_u24 v14, 3584, v11
    v_and_b32 v15, 1, v13
    v_lshlrev_b32 v15, 2, v15
    v_xor_b32 v15, v12, v15
    v_lshl_add_u32 v4, v15, 4, v14
    v_add_u32 v9, {8*3584}, v4
    s_lshl_b32 s34, s25, 2
    s_add_u32 s34, s34, s24
    s_mul_i32 s35, s34, {32*896}
    s_mul_i32 s36, s24, {16*3584}
    s_lshl_b32 s37, s26, 7
    s_add_u32 s38, s36, s37
    s_add_u32 s37, s38, {FH*2}
    s_lshl_b32 s39, s24, 12
    s_lshl_b32 s47, s24, 11
    s_lshl_b32 s49, s29, 2
    s_add_u32 s49, s49, s24
    s_lshl_b32 s27, s30, 1
    s_add_u32 s27, s27, s31
    """))
    if not OPT["k1_rot"]: e("s_mov_b32 s27, 0")
    e(lines("s_sub_u32 s33, s27, 7\ns_cmp_ge_u32 s27, 7\ns_cselect_b32 s27, s33, s27\ns_lshl_b32 s92, s27, 7"))
    for i in range(1, 7):
        e(lines(f"s_add_u32 s{92+i}, s{91+i}, 128\ns_cmp_eq_u32 s{92+i}, 896\ns_cselect_b32 s{92+i}, 0, s{92+i}"))
    e("s_waitcnt lgkmcnt(0)")
    e(stamp(0))
    e(srd(12, 4, S * D * 2)); e(srd(16, 6, D * F * 2))
    def dma_x(i):
        r = []
        for i4 in range(4):
            g = ([f"s_add_u32 s32, s35, s{92+i}"] if i4 == 0 else [f"s_add_u32 s32, s32, {16*896}"] if i4 == 2 else [])
            g = [f"s_add_u32 m0, s39, {i*16384 + i4*1024}"] + g + [('v', f"buffer_load_dwordx4 v{2 + (i4 & 1)}, s[12:15], s32 offen lds", ("x", i))]
            r.append(g)
        return r
    WLOC = [WR + i * 8192 for i in range(5)] + [0, 8192, WR, 16384, 24576, WR + 8192, 32768, 40960, WR + 16384]
    def dma_w(st):
        base = 37 if st < 7 else 38
        r = []
        for i2 in range(2):
            r.append([f"s_add_u32 m0, s47, {WLOC[st] + i2*1024}"] +
                     ([f"s_mul_i32 s43, s{92 + st % 7}, 1792", f"s_add_u32 s43, s43, s{base}"] if i2 == 0 else []) +
                     [('v', f"buffer_load_dwordx4 v{4 if i2 == 0 else 9}, s[16:19], s43 offen lds", ("w", st))])
        return r
    NI = OPT.get("k1_init", 3)
    lbl = name + "_nononce"
    e(lines(f"""
    s_or_b32 s33, s26, s24
    s_cmp_lg_u32 s33, 0
    s_cbranch_scc1 {lbl}
    s_or_b32 s61, s61, 0x80000000
    v_mov_b32 v12, s60
    v_mov_b32 v13, s61
    s_lshl_b32 s32, s25, 3
    v_mov_b32 v14, s32
    global_store_dwordx2 v14, v[12:13], s[8:9] sc0 sc1
    {lbl}:
    """))
    for i in range(NI):
        e(dma_x(i))
        if i < 5: e(dma_w(i))
    e(srd(20, 10, WS_SIZE))
    XA, WA = 5, 208
    e(lines(f"""
    v_and_b32 v11, 31, v1
    v_lshrrev_b32 v12, 5, v1
    v_bfe_u32 v13, v1, 1, 3
    v_xor_b32 v13, v13, v12
    v_lshlrev_b32 v14, 7, v11
    v_add_u32 v14, s39, v14
    v_lshl_add_u32 v5, v13, 4, v14
    s_lshl_b32 s32, s24, 5
    v_xor_b32 v5, s32, v5
    v_xor_b32 v6, 32, v5
    v_xor_b32 v7, 64, v5
    v_xor_b32 v8, 96, v5
    """ + TR_ADDR + f"""
    v_add_u32 v{WA}, s47, v14
    """))
    for t in range(1, 4): e(f"v_xor_b32 v{WA+t}, {t << 11}, v{WA}")
    for t in range(4): e(f"v_xor_b32 v{WA+4+t}, 64, v{WA+t}")
    for t in range(8): e(f"v_add_u32 v{WA+8+t}, {WR}, v{WA+t}")
    ACC = [16, 48]
    WFB = 80
    ONE = 104
    SUMA, GRAM, CSA = 108, 124, 140
    Z2P = 172
    TMP = 188
    GRN = 196
    BM, AC = 200, 204
    Z1P = 224
    NON = 240
    VK0, VK1, VSD, VMX = 242, 244, 246, 248
    SX = 252
    GR = 108
    for q in range(4): e(f"v_mov_b32 v{ONE+q}, 0x3f803f80")
    e(lines(f"""
    s_mov_b32 s48, 0x3f803f80
    s_mov_b32 s52, 0xaaaaaaaa
    s_mov_b32 s53, 0xaaaaaaaa
    s_mov_b32 s54, 0xcccccccc
    s_mov_b32 s55, 0xcccccccc
    s_mov_b32 s56, 0xff00ff00
    s_mov_b32 s57, 0xff00ff00
    s_mov_b32 s58, 0xffff0000
    s_mov_b32 s59, 0xffff0000
    s_mov_b32 s44, 0x0f0f0f0f
    s_mov_b32 s45, 0xf0f0f0f0
    s_mov_b32 s40, 0
    s_mov_b32 s41, -1
    """))
    def xa(k): return f"a[{4*(k%28)}:{4*(k%28)+3}]"
    def reads(k):
        st, t = k >> 2, k & 3
        r = []
        if st < 7:
            if k == 16: r += [f"v_add_u32 v{5+q}, 0x10000, v{5+q}" for q in range(4)]
            r.append(('l', f"ds_read_b128 {xa(k)}, v{5+t} offset:{(st & 3)*16384}", ("f", k)))
        loc = WLOC[st]; reg = 0
        if loc >= WR: loc -= WR; reg = 8
        for sub in range(2):
            for h in range(2):
                r.append(('l', f"ds_read_b64_tr_b16 {vr(WFB+8*(k%3)+4*sub+2*h,2)}, v{WA+reg+4*sub+t} offset:{loc + h*512}", ("f", k)))
        return r
    def mf(d, A_, B_, first):
        return f"v_mfma_f32_32x32x16_bf16 {vr(d,16)}, {A_}, {B_}, {'0' if first else vr(d,16)}"
    def compute(k):
        p = k // 28
        b = WFB + 8 * (k % 3)
        r = [mf(ACC[p] + 16 * sub, vr(b + 4 * sub, 4), xa(k), k % 28 == 0) for sub in range(2)]
        if p == 0:
            r.append(mf(SUMA, vr(ONE, 4), xa(k), k == 0))
            r.append(mf(GRAM, xa(k), xa(k), k == 0))
        if k % 4 == 0:
            r += [mf(CSA + 16 * sub, vr(ONE, 4), vr(b + 4 * sub, 4), k % 28 == 0) for sub in range(2)]
        return r
    sched = {k: [] for k in range(28)}
    rest = []
    for st in range(NI, 7):
        rest += [(0, g) for g in dma_x(st)]
        if st < 5: rest += [(0, g) for g in dma_w(st)]
        elif NI <= st: rest += [(6, g) for g in dma_w(st)]
    for st in range(5, 14):
        if st < 7 and NI <= st: continue
        rest += [(6 + 4 * ((st - 5) // 3), g) for g in dma_w(st)]
    RATE = OPT.get("k1_rate", 2)
    kk = 0; c = 0
    for (k0, g) in rest:
        if kk < k0: kk = k0; c = 0
        sched[kk].append(g)
        c += 1
        if c >= RATE: kk += 1; c = 0
    def sync(st):
        return [('wv', [("x", st), ("w", st)]), "s_barrier"]
    e(sync(0)); e(stamp(1))
    e(reads(0)); e(reads(1))
    for k in range(28):
        cm = compute(k)
        e(('wl', ("f", k)))
        e(cm[:2])
        if k + 2 < 28:
            if (k + 2) % 4 == 0: e(sync((k + 2) >> 2))
            e(reads(k + 2))
        e(cm[2:3])
        e(sched[k][:1])
        e(cm[3:4])
        e(sched[k][1:])
        e(cm[4:])
        if k == 23:
            e([f"s_lshl_b32 s33, s25, 3", "v_mov_b32 v11, s33", ('v', f"global_load_dwordx2 {vr(NON,2)}, v11, s[8:9] sc0 sc1", "nonce")])
    e(stamp(2))
    def cs_write(p):
        return lines(f"""
        s_lshl_b32 s32, s24, 2
        s_add_u32 s32, s32, {CSP + p*1024}
        v_lshl_add_u32 v11, v1, 4, s32
        v_cndmask_b32 v12, v{CSA}, v{CSA+16}, s[40:41]
        v_cvt_pk_bf16_f32 v13, v12, v12
        v_and_b32 v13, 0xffff0000, v13
        v_sub_f32 v12, v12, v13
        v_cvt_pk_bf16_f32 v12, v13, v12
        """) + [('l', f"ds_write_b32 v11, v12", "csw")]
    def cs_apply(p, mid):
        r = [f"v_and_b32 v11, 31, v1", f"v_lshlrev_b32 v11, 4, v11", f"v_add_u32 v11, {CSP + p*1024}, v11",
             ('l', f"ds_read_b128 {vr(AC,4)}, v11", "csr"), ('l', f"ds_read_b128 {vr(TMP,4)}, v11 offset:512", "csr")]
        r += mid
        r += [('wl', "csr"), mf(ACC[p], vr(AC, 4), vr(BM, 4), False), mf(ACC[p] + 16, vr(TMP, 4), vr(BM, 4), False)]
        return r
    c0 = -2.0 * math.sqrt(2.0 / math.pi) * math.log2(math.e)
    c1 = c0 * 0.044715
    def gelu_pack(p, dst):
        r = []
        G = 4
        for g0 in range(0, 16, G):
            prs = range(g0, g0 + G)
            z = {q: ACC[p] + 2*q for q in prs}
            t = {q: TMP + 2*(q - g0) for q in prs}
            for q in prs: r.append(f"v_pk_mul_f32 {vr(t[q],2)}, {vr(z[q],2)}, {vr(z[q],2)}")
            for q in prs: r.append(f"v_pk_fma_f32 {vr(t[q],2)}, {vr(t[q],2)}, {vr(VK1,2)}, {vr(VK0,2)} op_sel_hi:[1,0,0]")
            for q in prs: r.append(f"v_pk_mul_f32 {vr(t[q],2)}, {vr(t[q],2)}, {vr(z[q],2)}")
            for q in prs:
                r.append(f"v_exp_f32 v{t[q]}, v{t[q]}")
                r.append(f"v_exp_f32 v{t[q]+1}, v{t[q]+1}")
            for q in prs: r.append(f"v_pk_fma_f32 {vr(t[q],2)}, {vr(t[q],2)}, {vr(VSD,2)}, {vr(VSD,2)} op_sel_hi:[1,0,0]")
            for q in prs:
                r.append(f"v_rcp_f32 v{t[q]}, v{t[q]}")
                r.append(f"v_rcp_f32 v{t[q]+1}, v{t[q]+1}")
            for q in prs: r.append(f"v_pk_mul_f32 {vr(z[q],2)}, {vr(z[q],2)}, {vr(t[q],2)}")
            for q in prs: r.append(f"v_cvt_pk_bf16_f32 v{dst+q}, v{z[q]}, v{z[q]+1}")
        return r
    def gelu_scalar(p, dst):
        r = []
        G = 8
        for g0 in range(0, 32, G):
            es = range(g0, g0 + G)
            z = {q: ACC[p] + q for q in es}
            t = {q: TMP + (q - g0) for q in es}
            for q in es: r.append(f"v_mul_f32 v{t[q]}, v{z[q]}, v{z[q]}")
            for q in es: r.append(f"v_fma_f32 v{t[q]}, v{t[q]}, v{VK1}, v{VK0}")
            for q in es: r.append(f"v_mul_f32 v{t[q]}, v{t[q]}, v{z[q]}")
            for q in es: r.append(f"v_exp_f32 v{t[q]}, v{t[q]}")
            for q in es: r.append(f"v_fma_f32 v{t[q]}, v{t[q]}, v{VSD}, v{VSD}")
            for q in es: r.append(f"v_rcp_f32 v{t[q]}, v{t[q]}")
            for q in es: r.append(f"v_mul_f32 v{z[q]}, v{z[q]}, v{t[q]}")
            for q in es:
                if q & 1: r.append(f"v_cvt_pk_bf16_f32 v{dst+q//2}, v{z[q-1]}, v{z[q]}")
        return r
    e(cs_write(0))
    e([('wvl', ("w", 13), "csw"), "s_barrier"])
    xst = []
    for i in range(8): xst.append(f"v_cndmask_b32 v{GRAM+i}, v{GRAM+2*i}, v{GRAM+2*i+1}, s[52:53]")
    for i in range(4): xst.append(f"v_cndmask_b32 v{GRAM+i}, v{GRAM+2*i}, v{GRAM+2*i+1}, s[54:55]")
    for i in range(2): xst.append(f"v_cndmask_b32 v{GRAM+i}, v{GRAM+2*i}, v{GRAM+2*i+1}, s[56:57]")
    xst.append(f"v_cndmask_b32 v{GRAM}, v{GRAM}, v{GRAM+1}, s[58:59]")
    xst.append(f"v_cndmask_b32 v{GRAM}, 0, v{GRAM}, s[44:45]")
    xst += halfsum(GRAM, 14)
    xst += ln_stats(SUMA, GRAM, D, VMX, VSD, VMX + 1)
    xst += lines(f"""
    v_lshrrev_b32 v14, 16, v{VMX}
    v_or_b32 v14, v14, v{VMX}
    v_xor_b32 v14, 0x80008000, v14
    v_cndmask_b32 v{BM}, v14, 0, s[40:41]
    v_cndmask_b32 v{BM+1}, v14, 0, s[40:41]
    v_cndmask_b32 v{BM+2}, v14, 0, s[40:41]
    v_cndmask_b32 v{BM+3}, v14, 0, s[40:41]
    """)
    consts = lines(f"""
    v_mul_f32 v{VK0}, {f32(c0)}, v{VMX+1}
    v_mul_f32 v{VK1}, v{VMX+1}, v{VMX+1}
    v_mul_f32 v{VK1}, v{VK1}, v{VMX+1}
    v_mul_f32 v{VK1}, {f32(c1)}, v{VK1}
    """)
    touches = []
    if OPT["k1_wsp"]:
        touches += srd(52, 62, S * S * 2) + lines(f"""
        v_lshrrev_b32 v12, 4, v1
        v_and_b32 v13, 15, v1
        v_lshlrev_b32 v13, 7, v13
        v_lshl_add_u32 v12, v12, 12, v13
        s_lshr_b32 s32, s28, 1
        s_lshl_b32 s32, s32, 21
        s_lshl_b32 s33, s49, 14
        s_add_u32 s32, s32, s33
        s_and_b32 s33, s28, 1
        s_lshl_b32 s33, s33, 11
        s_add_u32 s32, s32, s33
        """) + [('v', "buffer_load_dword v2, v12, s[52:55], s32 offen", "touch2")]
        touches += srd(52, 66, D * S * 2) + srd(56, 64, FH * D * 2) + lines(f"""
        s_lshl_b32 s32, s2, 13
        s_lshl_b32 s33, s24, 11
        s_add_u32 s32, s32, s33
        v_and_b32 v12, 0x380, v13
        s_lshl_b32 s33, s2, 2
        s_add_u32 s33, s33, s24
        s_lshl_b32 s33, s33, 10
        """) + [('v', "buffer_load_dword v3, v13, s[52:55], s32 offen", "touch2"),
                ('v', "buffer_load_dword v4, v12, s[56:59], s33 offen", "touch2")]
    MERGE = OPT.get("k1_merge", 0)
    A = reads(28) + reads(29)
    e(cs_apply(0, A + xst))
    e(consts + touches)
    B = gelu_scalar(0, Z2P) if MERGE else gelu_pack(0, Z2P)
    dots = []
    for q in range(16):
        for (acc, s0) in ((SUMA, "s48"), (SUMA + 4, f"v{Z2P+q}")):
            if q < 4: dots.append(f"v_dot2_f32_bf16 v{acc+q}, {s0}, v{Z2P+q}, 0")
            else: dots.append(f"v_dot2c_f32_bf16 v{acc+(q&3)}, {s0}, v{Z2P+q}")
    B.append(dots)
    def sum4(dst, b):
        return [f"v_add_f32 v{b}, v{b}, v{b+1}", f"v_add_f32 v{b+2}, v{b+2}, v{b+3}", f"v_add_f32 v{dst}, v{b}, v{b+2}"]
    B += sum4(GRN, SUMA) + sum4(GRN + 2, SUMA + 4)
    B += halfsum(GRN, 14) + halfsum(GRN + 2, 15)
    lr, lo = name + "_nretry", name + "_nok"
    pub = [('wv', "nonce")] + lines(f"""
    s_mov_b32 s50, 0
    {lr}:
    v_readfirstlane_b32 s51, v{NON+1}
    s_cmp_lg_u32 s51, 0
    s_cbranch_scc1 {lo}
    s_add_u32 s50, s50, 1
    s_cmp_gt_u32 s50, 0x100000
    s_cbranch_scc1 {lo}
    s_sleep 1
    s_lshl_b32 s32, s25, 3
    v_mov_b32 v11, s32
    global_load_dwordx2 {vr(NON,2)}, v11, s[8:9] sc0 sc1
    s_waitcnt vmcnt(0)
    s_branch {lr}
    {lo}:
    v_mov_b32 v{GRN+1}, v{NON}
    v_mov_b32 v{GRN+3}, v{NON+1}
    s_mul_i32 s42, s34, {14*512}
    s_add_u32 s42, s42, {STATS}
    s_lshl_b32 s32, s26, 9
    s_add_u32 s32, s32, s42
    v_and_b32 v11, 31, v1
    v_lshlrev_b32 v11, 4, v11
    """) + [('v', f"buffer_store_dwordx4 {vr(GRN,4)}, v11, s[20:23], s32 offen sc0 sc1", "pub")] + stamp(3)
    B.append(pub)
    TB = 49152
    light = lines(f"""
    v_and_b32 v15, 31, v1
    v_lshlrev_b32 v15, 4, v15
    v_lshrrev_b32 v14, 5, v1
    v_mul_u32_u24 v14, 3584, v14
    v_add_u32 v15, v15, v14
    v_and_b32 v5, 31, v1
    v_lshlrev_b32 v6, 7, v5
    v_add_u32 v6, s39, v6
    v_add_u32 v6, {TB}, v6
    v_and_b32 v7, 1, v1
    v_lshrrev_b32 v8, 5, v1
    v_xor_b32 v7, v7, v8
    v_bfe_u32 v8, v1, 1, 1
    v_lshl_or_b32 v7, v8, 3, v7
    v_bfe_u32 v8, v1, 3, 1
    v_lshl_or_b32 v7, v8, 2, v7
    v_bfe_u32 v8, v1, 2, 1
    v_lshl_or_b32 v7, v8, 1, v7
    v_lshl_add_u32 v250, v7, 3, v6
    v_lshrrev_b32 v5, 5, v1
    v_bfe_u32 v6, v1, 2, 2
    v_lshl_add_u32 v6, v5, 3, v6
    v_lshlrev_b32 v6, 7, v6
    v_add_u32 v6, s39, v6
    v_add_u32 v6, {TB}, v6
    v_and_b32 v7, 3, v1
    v_bfe_u32 v8, v1, 4, 1
    v_xor_b32 v8, v8, v5
    v_lshl_or_b32 v7, v8, 2, v7
    v_bfe_u32 v8, v1, 2, 1
    v_xor_b32 v7, v7, v8
    v_bfe_u32 v8, v1, 3, 1
    v_lshl_or_b32 v7, v8, 3, v7
    v_lshl_add_u32 v251, v7, 3, v6
    v_lshlrev_b32 v10, 4, v1
    """)
    for q in range(16):
        t = 16 + 2 * q
        light += [f"v_lshlrev_b32 v{t}, 16, v{Z2P+q}", f"v_and_b32 v{t+1}, 0xffff0000, v{Z2P+q}"]
    A = []
    for k in range(28, 56):
        cm = compute(k)
        A.append(('wl', ("f", k)))
        A += cm[:1]
        if k + 2 < 56: A += reads(k + 2)
        A += cm[1:]
    if MERGE: e(merge(A, B + light, OPT.get("k1_ratio", 6.0)))
    else:
        e(B); e(merge(A, light, 1.5))
    e(stamp(4))
    def gran_loads():
        return [('v', f"buffer_load_dwordx4 {vr(GR+4*i,4)}, v15, s[20:23], s42 offen offset:{i*512} sc0 sc1", "gr") for i in range(7)]
    e(cs_write(1))
    e([('wl', "csw"), "s_barrier"])
    e(cs_apply(1, gran_loads() + lines(f"""
    s_lshl_b32 s32, s26, 7
    s_add_u32 s32, s32, s34
    s_lshl_b32 s32, s32, 11
    s_add_u32 s33, s32, {64*2048}
    """)))
    for sub in range(2):
        for g in range(4):
            e(f"v_xor_b32 v{80+4*sub+g}, {(8*sub+2*g) << 3}, v250")
    for sub in range(2):
        for h in range(2):
            e(f"v_xor_b32 v{88+2*sub+h}, {(8*sub+2*h) << 3}, v251")
    g1 = gelu_pack(1, Z1P)
    half = len(g1) // 2
    for sub in range(2):
        e(g1[sub*half:(sub+1)*half])
        for h in range(2):
            e(('v', f"buffer_store_dwordx4 {vr(Z1P+8*sub+4*h,4)}, v10, s[20:23], s{32+sub} offen offset:{h*1024}{STF}", "z1"))
    e(stamp(5))
    lr, lo = name + "_gretry", name + "_gok"
    e(["s_mov_b32 s50, 0", ('wv', "gr"), f"{lr}:"])
    e(lines(f"v_xor_b32 v12, v{GR+1}, v{NON}\nv_xor_b32 v13, v{GR+3}, v{NON+1}\nv_or_b32 v12, v12, v13"))
    for i in range(1, 7):
        e(lines(f"v_xor_b32 v13, v{GR+4*i+1}, v{NON}\nv_xor_b32 v14, v{GR+4*i+3}, v{NON+1}\nv_or3_b32 v12, v12, v13, v14"))
    e(lines(f"""
    v_cmp_ne_u32 vcc, 0, v12
    s_cbranch_vccz {lo}
    s_add_u32 s50, s50, 1
    s_cmp_gt_u32 s50, 0x100000
    s_cbranch_scc1 {lo}
    s_sleep 1
    """))
    e(gran_loads())
    e(lines(f"s_waitcnt vmcnt(0)\ns_branch {lr}\n{lo}:"))
    e(stamp(6))
    for c in (0, 2):
        e([f"v_add3_u32 v12, 0, 0, 0"] if False else [])
        e([f"v_add_f32 v{GR+c}, v{GR+c}, v{GR+4+c}", f"v_add_f32 v{GR+8+c}, v{GR+8+c}, v{GR+12+c}", f"v_add_f32 v{GR+16+c}, v{GR+16+c}, v{GR+20+c}"])
    for c in (0, 2):
        e([f"v_add_f32 v{GR+c}, v{GR+c}, v{GR+8+c}", f"v_add_f32 v{GR+16+c}, v{GR+16+c}, v{GR+24+c}"])
    for c in (0, 2):
        e(f"v_add_f32 v{GR+c}, v{GR+c}, v{GR+16+c}")
    e(halfsum(GR, 13) + halfsum(GR + 2, 14))
    VM2, VR2 = 252, 254
    e(ln_stats(GR, GR + 2, FH, VM2, 13, VR2))
    e([f"v_mul_f32 v{VM2}, v{VM2}, v{VR2}", f"v_sub_f32 v{VM2}, 0, v{VM2}"])
    e(lines(f"""
    s_lshl_b32 s32, s26, 8
    s_lshl_b32 s33, s34, 1
    s_add_u32 s32, s32, s33
    s_lshl_b32 s32, s32, 10
    s_add_u32 s32, s32, {Z2F}
    s_add_u32 s33, s32, {128*1024}
    """))
    for sub in range(2):
        for q in range(8 * sub, 8 * sub + 8):
            t = 16 + 2 * q
            e(f"v_pk_fma_f32 {vr(t,2)}, {vr(t,2)}, {vr(VR2,2)}, {vr(VM2,2)} op_sel_hi:[1,0,0]")
        for q in range(8 * sub, 8 * sub + 8):
            t = 16 + 2 * q
            e(f"v_cvt_pk_bf16_f32 v{Z2P+q}, v{t}, v{t+1}")
            if q & 1: e(('l', f"ds_write_b64 v{80+(q>>1)}, {vr(Z2P+q-1,2)}", ("tw", sub)))
        for ks2 in range(2):
            for h in range(2):
                e(('l', f"ds_read_b64_tr_b16 {vr(140+8*sub+4*ks2+2*h,2)}, v{88+2*sub+h} offset:{(16*ks2+4*h)*128}", ("tr", sub, ks2)))
    for sub in range(2):
        for ks2 in range(2):
            e(('wl', ("tr", sub, ks2)))
            e(f"buffer_store_dwordx4 {vr(140+8*sub+4*ks2,4)}, v10, s[20:23], s{32+sub} offen offset:{ks2*1024}{STF}")
    lx = name + "_noxst"
    e(lines(f"""
    s_cmp_lg_u32 s26, 0
    s_cbranch_scc1 {lx}
    v_and_b32 v11, 31, v1
    v_lshlrev_b32 v11, 3, v11
    s_lshl_b32 s32, s34, 8
    s_add_u32 s32, s32, {XST}
    buffer_store_dwordx2 {vr(VMX,2)}, v11, s[20:23], s32 offen
    {lx}:
    """))
    e(stamp_out(0))
    e("s_endpgm")
    e = Em(a)
    e(lines(f"""
    {name}_side:
    s_load_dwordx4 s[4:7], s[0:1], 8
    s_load_dwordx2 s[8:9], s[0:1], 24
    s_load_dwordx2 s[10:11], s[0:1], 104
    s_load_dwordx2 s[44:45], s[0:1], 72
    s_load_dwordx2 s[46:47], s[0:1], 40
    v_lshrrev_b32 v1, 6, v0
    v_readfirstlane_b32 s24, v1
    v_and_b32 v1, 63, v0
    s_sub_u32 s25, s2, 224
    s_lshl_b32 s25, s25, 2
    s_add_u32 s25, s25, s24
    s_lshl_b32 s26, s25, 4
    s_mul_i32 s27, s26, 896
    v_lshlrev_b32 v2, 4, v1
    v_add_u32 v2, s27, v2
    v_add_u32 v3, {(-3*896) & 0xffffffff}, v2
    v_add_u32 v4, {(-2*896) & 0xffffffff}, v2
    v_add_u32 v5, {(-1*896) & 0xffffffff}, v2
    v_lshlrev_b32 v6, 6, v1
    s_lshl_b32 s33, s24, 1
    s_sub_u32 s33, 6, s33
    v_and_b32 v7, 7, v1
    v_xor_b32 v7, s33, v7
    v_lshlrev_b32 v7, 4, v7
    v_lshl_add_u32 v7, v1, 10, v7
    v_cmp_gt_u32 vcc, 56, v1
    s_and_b64 exec, exec, vcc
    s_waitcnt lgkmcnt(0)
    """))
    for i in range(8): e(stamp(i))
    e(srd(12, 4, S * D * 2)); e(srd(16, 6, S * D * 2)); e(srd(28, 8, D * 4 * 2)); e(srd(20, 10, WS_SIZE))
    KR, VRW, WRAW, WT, KW, TMP2 = 8, 84, 148, 164, 196, 228
    for i in range(4):
        e(('v', f"buffer_load_dwordx4 {vr(WRAW+4*i,4)}, v6, s[28:31], 0 offen offset:{16*i}", "w"))
    for r in range(3):
        e(('v', f"buffer_load_dwordx4 {vr(KR+4*r,4)}, v{3+r}, s[12:15], 0 offen", "h"))
    def ld(r):
        return [f"s_mov_b32 s32, {r*896}",
                ('v', f"buffer_load_dwordx4 {vr(KR+4*(r+3),4)}, v2, s[12:15], s32 offen", ("r", r)),
                ('v', f"buffer_load_dwordx4 {vr(VRW+4*r,4)}, v2, s[16:19], s32 offen", ("r", r))]
    AH = OPT.get('side_ah', 8)
    for r in range(AH): e(ld(r))
    e(('wv', "w"))
    for c in range(8):
        e([f"v_lshlrev_b32 v{WT+0*8+c}, 16, v{WRAW+2*c}", f"v_and_b32 v{WT+1*8+c}, 0xffff0000, v{WRAW+2*c}",
           f"v_lshlrev_b32 v{WT+2*8+c}, 16, v{WRAW+2*c+1}", f"v_and_b32 v{WT+3*8+c}, 0xffff0000, v{WRAW+2*c+1}"])
    def unpack(dst, src):
        r = []
        for q in range(4):
            r += [f"v_lshlrev_b32 v{dst+2*q}, 16, v{src+q}", f"v_and_b32 v{dst+2*q+1}, 0xffff0000, v{src+q}"]
        return r
    e(('wv', "h"))
    e(stamp(1))
    for r in range(3): e(unpack(KW + 8 * (r % 4), KR + 4 * r))
    outreg = lambda c: (148 + 4*c) if c < 4 else (240 + 4*(c-4))
    for r in range(16):
        if r + AH < 16: e(ld(r + AH))
        e(('wv', ("r", r)))
        e(unpack(KW + 8 * ((r + 3) % 4), KR + 4 * (r + 3)))
        acc = TMP2 if (r & 1) == 0 else KR + 4 * (r & ~1)
        for q in range(4):
            e(f"v_pk_mul_f32 {vr(acc+2*q,2)}, {vr(KW+8*((r+0)%4)+2*q,2)}, {vr(WT+3*8+2*q,2)}")
        for j in (2, 1, 0):
            for q in range(4):
                e(f"v_pk_fma_f32 {vr(acc+2*q,2)}, {vr(KW+8*((r+3-j)%4)+2*q,2)}, {vr(WT+j*8+2*q,2)}, {vr(acc+2*q,2)}")
        vt = KW + 8 * (r % 4)
        e(unpack(vt, VRW + 4 * r))
        for q in range(4):
            e(f"v_pk_mul_f32 {vr(acc+2*q,2)}, {vr(acc+2*q,2)}, {vr(vt+2*q,2)}")
        if r & 1:
            q = 3 - ((r & 7) >> 1)
            for c in range(8):
                e(f"v_cvt_pk_bf16_f32 v{outreg(c)+q}, v{acc+c}, v{TMP2+c}")
        if (r & 7) == 7:
            e(f"v_xor_b32 v3, {16 if r == 7 else 0}, v7")
            for c in range(8):
                e(('l', f"ds_write_b128 v3, {vr(outreg(c),4)} offset:{c*128}", "tw"))
    e(["s_mov_b64 exec, -1", ('wl', "tw"), "s_barrier"])
    e(lines(f"""
    v_lshrrev_b32 v4, 3, v1
    v_mul_u32_u24 v4, {URS}, v4
    v_and_b32 v5, 7, v1
    v_lshl_add_u32 v4, v5, 4, v4
    s_sub_u32 s33, s2, 224
    s_lshl_b32 s33, s33, 7
    s_sub_u32 s33, {UR + 4096 - 128}, s33
    s_mul_i32 s34, s24, {8*URS}
    s_add_u32 s33, s33, s34
    s_lshl_b32 s34, s24, 10
    v_lshl_add_u32 v5, v1, 4, s34
    s_lshl_b32 s34, s24, 4
    v_xor_b32 v5, s34, v5
    v_xor_b32 v6, 64, v5
    """))
    for i in range(14):
        e(('l', f"ds_read_b128 {vr(8+4*i,4)}, v{5 + (i & 1)} offset:{i*4096}", ("rd", i)))
    for i in range(14):
        e(('wl', ("rd", i)))
        e(f"buffer_store_dwordx4 {vr(8+4*i,4)}, v4, s[20:23], s33 offen{STF}")
        if i < 13: e(f"s_add_u32 s33, s33, {32*URS}")
    if OPT["k1_wsp"]:
        e(srd(52, 62, S * S * 2))
        e(lines("s_and_b32 s28, s2, 7\ns_lshr_b32 s49, s2, 3\ns_lshl_b32 s49, s49, 2\ns_add_u32 s49, s49, s24"))
        e(lines(f"""
        v_lshrrev_b32 v236, 4, v1
        v_and_b32 v237, 15, v1
        v_lshlrev_b32 v237, 7, v237
        v_lshl_add_u32 v236, v236, 12, v237
        s_lshr_b32 s32, s28, 1
        s_lshl_b32 s32, s32, 21
        s_lshl_b32 s33, s49, 14
        s_add_u32 s32, s32, s33
        s_and_b32 s33, s28, 1
        s_lshl_b32 s33, s33, 11
        s_add_u32 s32, s32, s33
        """))
        e("buffer_load_dword v238, v236, s[52:55], s32 offen")
    e(srd(52, 44, S * 2)); e(srd(56, 46, D * 2))
    e(["v_lshlrev_b32 v3, 7, v1", "buffer_load_dword v2, v3, s[52:55], 0 offen", "buffer_load_dword v7, v3, s[56:59], 0 offen"])
    e(stamp(6))
    e(stamp_out(0))
    e(f"{name}_end:")
    e("s_endpgm")
    return a

def gen_k2(name):
    a = Asm(); e = Em(a)
    NSLOT = OPT["NSLOT2"]; ZD = OPT["ZD"]
    SLOT = 16384
    CB = NSLOT * SLOT
    HSZ = 4 * 4160
    CH = HSZ + 4608
    XCH = (CB + 2 * CH + 16383) // 16384 * 16384
    NST = 16
    e(lines(f"""
    s_cmp_ge_u32 s2, 256
    s_cbranch_scc1 {name}_end
    s_load_dwordx4 s[4:7], s[0:1], 64
    s_load_dwordx4 s[8:11], s[0:1], 32
    s_load_dwordx2 s[28:29], s[0:1], 104
    s_load_dwordx2 s[62:63], s[0:1], 0
    s_load_dwordx2 s[64:65], s[0:1], 80
    v_lshrrev_b32 v1, 6, v0
    v_readfirstlane_b32 s24, v1
    v_and_b32 v1, 63, v0
    s_and_b32 s30, s2, 7
    s_lshr_b32 s31, s2, 3
    s_and_b32 s47, s30, 1
    s_cmp_ge_u32 s2, 224
    s_cbranch_scc1 {name}_pf
    s_mul_i32 s32, s31, 37
    s_lshr_b32 s32, s32, 8
    s_mul_i32 s33, s32, 7
    s_sub_u32 s25, s31, s33
    s_lshr_b32 s26, s30, 1
    s_lshl_b32 s26, s26, 2
    s_add_u32 s26, s26, s32
    s_cmp_ge_u32 s24, 4
    s_cbranch_scc1 {name}_conv
    s_setprio {OPT.get("k2_prio", 1)}
    s_lshl_b32 s27, s25, 2
    s_add_u32 s27, s27, s24
    v_lshlrev_b32 v4, 4, v1
    s_lshl_b32 s35, s27, 17
    s_lshl_b32 s36, s47, 16
    s_add_u32 s35, s35, s36
    s_add_u32 s35, s35, {Z2F}
    s_waitcnt lgkmcnt(0)
    """))
    e(stamp(0))
    e(srd(20, 28, WS_SIZE)); e(srd(16, 6, S * 2))
    e(["s_cmp_eq_u32 s47, 0", "s_cselect_b32 s18, s18, 0"])
    ACC = 16
    WF = 80
    Z1R = 128
    BIA = 160
    ZB = 168
    def zreg(k): return ZB + 4 * (k % (ZD + 1))
    def zload(k):
        r = []
        if OPT.get("x2_noload") and k >= ZD + 1: return r
        if k % 4 == 0: r.append(f"s_add_u32 s33, s35, {k*1024}")
        r.append(('v', f"buffer_load_dwordx4 {vr(zreg(k),4)}, v4, s[20:23], s33 offen offset:{(k%4)*1024}", ("z", k)))
        return r
    for k in range(ZD): e(zload(k))
    e(lines(f"""
    v_and_b32 v11, 31, v1
    v_lshrrev_b32 v12, 5, v1
    v_bfe_u32 v13, v1, 1, 3
    v_xor_b32 v13, v13, v12
    v_lshlrev_b32 v14, 7, v11
    v_lshl_add_u32 v5, v13, 4, v14
    v_xor_b32 v6, 32, v5
    v_xor_b32 v7, 64, v5
    v_xor_b32 v8, 96, v5
    v_add_u32 v12, 0x10000, v5
    v_add_u32 v13, 0x10000, v6
    v_add_u32 v14, 0x10000, v7
    v_add_u32 v15, 0x10000, v8
    v_lshlrev_b32 v11, 1, v11
    """))
    for r in range(ACC, ACC + 64): e(f"v_mov_b32 v{r}, 0")
    def wreads(k):
        st, ks = k >> 2, k & 3
        r = []
        for ts in range(4):
            o = (st % NSLOT) * SLOT + ts * 4096
            ad = 5 + ks
            if o >= 65536: o -= 65536; ad = 12 + ks
            r.append(('l', f"ds_read_b128 {vr(WF+16*(k%3)+4*ts,4)}, v{ad} offset:{o}", ("w", k)))
        return r
    z1l = lines(f"s_lshl_b32 s36, s27, 6\ns_lshl_b32 s37, s26, 2\ns_add_u32 s36, s36, s37\ns_lshl_b32 s36, s36, 11\ns_add_u32 s37, s36, 4096\ns_lshl_b32 s38, s26, 8")
    for i in range(8):
        z1l.append(('v', f"buffer_load_dwordx4 {vr(Z1R+4*i,4)}, v4, s[20:23], s{36 + (i >> 2)} offen offset:{(i & 3)*1024}", "z1"))
    for ts in range(4):
        z1l.append(('v', f"buffer_load_ushort v{BIA+2*ts}, v11, s[16:19], s38 offen offset:{ts*64}", "z1"))
    Z1AT = OPT.get("k2_z1at", -1)
    if Z1AT < 0: e(z1l)
    e("s_barrier"); e(stamp(1))
    e(wreads(0)); e(wreads(1))
    NK = 64
    for k in range(NK):
        if k + 2 < NK:
            if (k + 2) % 4 == 0: e("s_barrier")
            e(wreads(k + 2))
        if k + ZD < NK: e(zload(k + ZD))
        if k == Z1AT: e(z1l)
        e(('wvl', ("z", k), ("w", k)))
        for ts in range(4):
            if not OPT.get("x2_nomfma"): e(f"v_mfma_f32_32x32x16_bf16 {vr(ACC+16*ts,16)}, {vr(zreg(k),4)}, {vr(WF+16*(k%3)+4*ts,4)}, {vr(ACC+16*ts,16)}")
    e(stamp(2))
    e("s_waitcnt vmcnt(0)")
    for ts in range(4): e(f"v_lshlrev_b32 v{BIA+2*ts}, 16, v{BIA+2*ts}")
    e(lines(f"""
    s_mul_i32 s33, s26, 224
    s_lshl_b32 s37, s27, 1
    s_add_u32 s33, s33, s37
    s_lshl_b32 s33, s33, 10
    s_lshl_b32 s37, s47, 22
    s_add_u32 s33, s33, s37
    s_add_u32 s33, s33, {PF}
    """))
    T = 80
    for ts in range(4):
        for q in range(8):
            e([f"v_lshlrev_b32 v{T+2*q}, 16, v{Z1R+8*ts+q}", f"v_and_b32 v{T+2*q+1}, 0xffff0000, v{Z1R+8*ts+q}"])
        for q in range(8):
            e(f"v_pk_add_f32 {vr(ACC+16*ts+2*q,2)}, {vr(ACC+16*ts+2*q,2)}, {vr(BIA+2*ts,2)} op_sel_hi:[1,0]")
        for q in range(8):
            e(f"v_pk_mul_f32 {vr(T+2*q,2)}, {vr(T+2*q,2)}, {vr(ACC+16*ts+2*q,2)}")
        P = 96 + 8 * ts
        for q in range(8):
            e(f"v_cvt_pk_bf16_f32 v{P+q}, v{T+2*q}, v{T+2*q+1}")
        for k2 in range(2):
            e(f"v_permlane32_swap_b32 v{P+4*k2}, v{P+4*k2+2}")
            e(f"v_permlane32_swap_b32 v{P+4*k2+1}, v{P+4*k2+3}")
        for k2 in range(2):
            e(f"buffer_store_dwordx4 {vr(P+4*k2,4)}, v4, s[20:23], s33 offen offset:{k2*1024}")
        if ts < 3: e(f"s_add_u32 s33, s33, {56*1024}")
    for i in range(3, 7): e(stamp(i))
    e(stamp_out(1))
    e("s_endpgm")
    e = Em(a)
    e(lines(f"""
    {name}_conv:
    s_sub_u32 s38, s24, 4
    s_lshr_b32 s39, s38, 1
    s_and_b32 s27, s38, 1
    s_lshl_b32 s40, s2, 1
    s_add_u32 s40, s40, s39
    s_mul_i32 s41, s39, {CH}
    s_add_u32 s41, s41, {CB}
    s_add_u32 s42, s41, {HSZ}
    s_lshl_b32 s33, s40, 12
    v_lshrrev_b32 v11, 3, v1
    v_and_b32 v12, 7, v1
    v_lshrrev_b32 v13, 4, v1
    v_lshlrev_b32 v14, 12, v11
    v_xor_b32 v15, v12, v13
    v_lshl_add_u32 v54, v15, 4, v14
    v_xor_b32 v15, 4, v15
    v_lshl_add_u32 v55, v15, 4, v14
    v_add_u32 v55, 0x8000, v55
    s_lshl_b32 s43, s26, 2
    s_add_u32 s43, s43, s38
    s_lshl_b32 s43, s43, 17
    s_lshl_b32 s44, s47, 11
    s_add_u32 s43, s43, s44
    s_lshl_b32 s44, s38, 12
    s_waitcnt lgkmcnt(0)
    s_add_u32 s8, s8, s33
    s_addc_u32 s9, s9, 0
    """))
    for i in range(8): e(stamp(i))
    e(srd(48, 4, S * S * 2))
    def wdma(st):
        r = []
        if OPT.get("x2_noload") and st >= NSLOT: return r
        for i4 in range(4):
            if i4 % 2 == 0: r.append(f"s_add_u32 s33, s43, {st*128 + (i4 >> 1)*65536}")
            r += [f"s_add_u32 m0, s44, {(st % NSLOT)*SLOT + i4*1024}",
                  ('v', f"buffer_load_dwordx4 v{54 + (i4 & 1)}, s[48:51], s33 offen lds", ("w", st))]
        return r
    e(wdma(0))
    e(srd(12, 8, 4096)); e(srd(16, 10, D * 2)); e(srd(20, 28, WS_SIZE))
    e(lines(f"""
    v_lshlrev_b32 v2, 4, v1
    s_lshl_b32 s34, s27, 11
    v_add_u32 v3, s34, v2
    v_and_b32 v4, 1, v1
    v_lshlrev_b32 v4, 4, v4
    v_add_u32 v5, {(-32) & 0xffffffff}, v4
    v_add_u32 v6, {(-16) & 0xffffffff}, v4
    """))
    HA = 64
    for it in range(2):
        e(('v', f"buffer_load_dwordx4 {vr(HA+8*it,4)}, v3, s[12:15], 0 offen offset:{it*1024}", "h"))
        e(('v', f"buffer_load_dwordx2 {vr(HA+8*it+4,2)}, v3, s[12:15], 0 offen offset:{it*1024+16}", "h"))
    e(('v', f"buffer_load_dwordx4 {vr(HA+16,4)}, v5, s[12:15], 0 offen", "h"))
    e(('v', f"buffer_load_dwordx2 {vr(HA+20,2)}, v6, s[12:15], 0 offen", "h"))
    e(lines(f"s_mul_i32 s35, s40, {URS}\ns_add_u32 s35, s35, {UR}\ns_add_u32 s35, s35, s34\ns_add_u32 m0, s42, s34"))
    e(('v', f"buffer_load_dwordx4 v2, s[20:23], s35 offen lds", "h"))
    e(('v', f"buffer_load_dwordx4 v2, s[20:23], s35 offen offset:1024 lds", "h"))
    e(lines(f"s_lshl_b32 s35, s40, 1\nv_mov_b32 v7, s35"))
    e(('v', f"buffer_load_ushort v60, v7, s[16:19], 0 offen", "h"))
    WD0 = OPT.get("k2_wd0", 3)
    for st in range(1, WD0): e(wdma(st))
    e(lines(f"v_lshlrev_b32 v8, 3, v1\nv_add_u32 v8, s42, v8\nv_mov_b32 v10, 0\nv_mov_b32 v11, 0\nds_write_b64 v8, v[10:11] offset:4096"))
    for r in range(16, 48): e(f"v_mov_b32 v{r}, 0")
    e(lines(f"""
    v_and_b32 v9, 15, v1
    v_lshrrev_b32 v10, 4, v1
    v_add_u32 v11, 1, v9
    v_and_b32 v12, 3, v11
    v_mul_u32_u24 v12, 4160, v12
    v_and_b32 v11, 0x1c, v11
    v_lshl_add_u32 v12, v11, 1, v12
    v_lshl_add_u32 v12, v10, 4, v12
    s_lshl_b32 s35, s27, 8
    s_add_u32 s36, s41, s35
    v_add_u32 v50, s36, v12
    v_lshlrev_b32 v12, 5, v9
    v_lshlrev_b32 v13, 4, v10
    v_sub_u32 v13, v13, v12
    s_add_u32 s36, s42, s35
    s_add_u32 s36, s36, 480
    v_add_u32 v51, s36, v13
    s_add_u32 s36, s41, 32
    v_add_u32 v52, s36, v3
    v_add_u32 v53, s41, v4
    """))
    nb = [0]
    nxt_dma = [WD0]
    def bar():
        s_ = nb[0]
        e(('wv', ("w", s_)))
        e("s_barrier")
        if nxt_dma[0] < NST and nxt_dma[0] <= max(s_ - 2, -1) + NSLOT:
            e(wdma(nxt_dma[0])); nxt_dma[0] += 1
        if s_ == OPT.get("k2_pfat", 15) and OPT["k2_k3pf"]:
            e(srd(52, 64, FH * D * 2)); e(srd(56, 62, S * D * 2))
            e(lines(f"""
            v_lshlrev_b32 v56, 7, v1
            s_lshl_b32 s33, s31, 2
            s_add_u32 s33, s33, s38
            s_lshl_b32 s45, s33, 13
            s_mul_i32 s46, s30, {256*896}
            s_lshl_b32 s33, s33, 11
            s_add_u32 s46, s46, s33
            v_and_b32 v57, 0x780, v56
            """))
            e(('v', "buffer_load_dword v58, v56, s[52:55], s45 offen", "pf"))
            e(('v', "buffer_load_dword v59, v57, s[56:59], s46 offen", "pf"))
        nb[0] += 1
    bar(); bar()
    for it in range(3):
        A = HA + 8 * it
        O = 96 + 12 * it
        for q in range(4):
            e(f"v_alignbit_b32 v{O+q}, v{A+q+1}, v{A+q}, 16")
            e(f"v_mov_b32 v{O+4+q}, v{A+q+1}")
            e(f"v_alignbit_b32 v{O+8+q}, v{A+q+2}, v{A+q+1}, 16")
        ad = 52 if it < 2 else 53
        off = it * 1024 if it < 2 else 0
        e(f"ds_write_b128 v{ad}, {vr(A,4)} offset:{off}")
        for c in range(1, 4):
            e(f"ds_write_b128 v{ad}, {vr(O+4*(c-1),4)} offset:{off + c*4160}")
    e("s_waitcnt lgkmcnt(0)")
    bar()
    e(stamp(1))
    FBc = [64, 128]
    def loads(r):
        b = FBc[r & 1]
        lst = []
        for c in range(8):
            lst.append(f"ds_read_b128 {vr(b+32+4*c,4)}, v51 offset:{512*(7-c) + 64*r}")
            lst.append(f"ds_read_b64 {vr(b+4*c,2)}, v50 offset:{64*(8*c+r)}")
            lst.append(f"ds_read_b64 {vr(b+4*c+2,2)}, v50 offset:{64*(8*c+r)+8}")
        return lst
    for l in loads(0)[:12]: e(l)
    e("s_waitcnt lgkmcnt(0)")
    for l in loads(0)[12:]: e(l)
    e("s_waitcnt lgkmcnt(0)")
    cnt = 0
    PER = 12
    for r in range(4):
        b = FBc[r & 1]
        nxt = loads(r + 1) if r < 3 else []
        mm = [(c, q) for c in range(8) for q in range(8 - c)]
        for i, (c, q) in enumerate(mm):
            if not OPT.get("x2_noconv"):
                e(f"v_mfma_f32_16x16x32_bf16 {vr(16+4*(c+q),4)}, {vr(b+4*c,4)}, {vr(b+32+4*q,4)}, {vr(16+4*(c+q),4)}")
                if i < len(nxt): e(nxt[i])
            cnt += 1
            if cnt % PER == 0 and cnt < 144:
                e("s_waitcnt lgkmcnt(0)")
                bar()
    e(stamp(2))
    e(lines(f"""
    s_lshl_b32 s35, s38, 12
    s_add_u32 s35, s35, {XCH}
    v_add_u32 v52, s35, v2
    s_xor_b32 s35, s35, 4096
    v_add_u32 v53, s35, v2
    s_cmp_eq_u32 s27, 0
    s_cbranch_scc1 {name}_h0
    """))
    for t in range(16):
        e(lines(f"v_mov_b32 v{64+t}, v{16+t}\nv_mov_b32 v{16+t}, v{32+t}\nv_mov_b32 v{32+t}, v{64+t}"))
    e(f"{name}_h0:")
    e("s_nop 7")
    for t in range(4):
        e(f"ds_write_b128 v52, {vr(32+4*t,4)} offset:{t*1024}")
    e("s_waitcnt lgkmcnt(0)")
    bar()
    for t in range(4):
        e(f"ds_read_b128 {vr(64+4*t,4)}, v53 offset:{t*1024}")
    e(lines(f"""
    v_lshlrev_b32 v12, 5, v9
    v_lshl_add_u32 v12, v10, 3, v12
    s_lshl_b32 s35, s27, 11
    s_sub_u32 s36, s42, s35
    s_add_u32 s36, s36, {4088 - 3*512}
    v_sub_u32 v13, s36, v12
    """))
    for t in range(4):
        e(f"ds_read_b64 {vr(80+2*t,2)}, v13 offset:{(3-t)*512}")
    e(lines(f"v_lshlrev_b32 v60, 16, v60\ns_lshl_b32 s36, s40, 12\ns_add_u32 s36, s36, s35\ns_add_u32 s36, s36, {YT}\ns_waitcnt lgkmcnt(0)"))
    for t in range(4):
        Y = 16 + 4 * t
        U = 96
        e(lines(f"""
        v_pk_add_f32 {vr(Y,2)}, {vr(Y,2)}, {vr(64+4*t,2)}
        v_pk_add_f32 {vr(Y+2,2)}, {vr(Y+2,2)}, {vr(66+4*t,2)}
        v_and_b32 v{U}, 0xffff0000, v{81+2*t}
        v_lshlrev_b32 v{U+1}, 16, v{81+2*t}
        v_and_b32 v{U+2}, 0xffff0000, v{80+2*t}
        v_lshlrev_b32 v{U+3}, 16, v{80+2*t}
        v_fmac_f32 v{Y}, v{U}, v60
        v_fmac_f32 v{Y+1}, v{U+1}, v60
        v_fmac_f32 v{Y+2}, v{U+2}, v60
        v_fmac_f32 v{Y+3}, v{U+3}, v60
        v_cvt_pk_bf16_f32 v{100+2*t}, v{Y}, v{Y+1}
        v_cvt_pk_bf16_f32 v{101+2*t}, v{Y+2}, v{Y+3}
        """))
    assert nb[0] <= NST, nb[0]
    while nb[0] < NST: bar()
    assert nxt_dma[0] == NST
    for t in range(4):
        e(f"buffer_store_dwordx2 {vr(100+2*t,2)}, v12, s[20:23], s36 offen offset:{t*512} sc1")
    e(stamp_out(1))
    e("s_endpgm")
    e = Em(a)
    e(lines(f"""
    {name}_pf:
    s_sub_u32 s32, s31, 28
    s_lshl_b32 s32, s32, 3
    s_add_u32 s32, s32, s24
    s_lshl_b32 s36, s47, 16
    s_add_u32 s36, s36, {Z2F}
    v_lshlrev_b32 v2, 7, v1
    s_waitcnt lgkmcnt(0)
    """))
    for i in range(8): e(stamp(i))
    e(srd(20, 28, WS_SIZE))
    if OPT["k2_zpf"]:
        for i in range(7):
            e(lines(f"""
            s_mul_i32 s33, s32, 2341
            s_lshr_b32 s33, s33, 16
            s_mul_i32 s34, s33, 28
            s_sub_u32 s34, s32, s34
            s_lshl_b32 s34, s34, 17
            s_lshl_b32 s33, s33, 13
            s_add_u32 s33, s33, s34
            s_add_u32 s33, s33, s36
            buffer_load_dword v{8+i}, v2, s[20:23], s33 offen
            s_add_u32 s32, s32, 32
            """))
    e(stamp_out(1))
    e(f"{name}_end:")
    e("s_endpgm")
    return a, XCH + 4 * 4096, ZB + 4 * (ZD + 1)

def gen_k3(name):
    a = Asm(); e = Em(a)
    WSZ = 28672
    YB = 4 * WSZ
    e(lines(f"""
    s_cmp_ge_u32 s2, 256
    s_cbranch_scc1 {name}_end
    s_load_dwordx2 s[4:5], s[0:1], 0
    s_load_dwordx4 s[8:11], s[0:1], 80
    s_load_dwordx2 s[28:29], s[0:1], 104
    v_lshrrev_b32 v1, 6, v0
    v_readfirstlane_b32 s24, v1
    v_and_b32 v1, 63, v0
    s_and_b32 s30, s2, 7
    s_lshr_b32 s31, s2, 3
    s_and_b32 s50, s30, 1
    s_lshl_b32 s50, s50, 22
    s_cmp_ge_u32 s2, 224
    s_cbranch_scc1 {name}_pf
    s_mul_i32 s32, s31, 37
    s_lshr_b32 s32, s32, 8
    s_mul_i32 s33, s32, 7
    s_sub_u32 s26, s31, s33
    s_lshl_b32 s25, s30, 2
    s_add_u32 s25, s25, s32
    v_lshrrev_b32 v11, 3, v1
    v_and_b32 v12, 7, v1
    v_bfe_u32 v13, v1, 4, 1
    v_mul_u32_u24 v14, 896, v11
    v_lshlrev_b32 v13, 2, v13
    v_xor_b32 v15, v12, v13
    v_lshl_add_u32 v2, v15, 4, v14
    v_lshlrev_b32 v4, 4, v1
    s_lshr_b32 s38, s24, 1
    s_and_b32 s39, s24, 1
    s_mul_i32 s34, s24, {224*896}
    s_lshl_b32 s35, s26, 7
    s_add_u32 s34, s34, s35
    s_lshl_b32 s44, s25, 1
    s_add_u32 s44, s44, s39
    s_xor_b32 s49, s44, 1
    s_mul_i32 s36, s24, {14*1024}
    s_add_u32 s36, s36, {PF}
    s_add_u32 s36, s36, s50
    s_mul_i32 s35, s44, {56*1024}
    s_add_u32 s35, s35, s36
    s_mul_i32 s49, s49, {56*1024}
    s_add_u32 s36, s49, s36
    s_xor_b32 s52, s35, 0x400000
    s_xor_b32 s53, s36, 0x400000
    s_mul_i32 s37, s24, {WSZ}
    s_waitcnt lgkmcnt(0)
    """))
    e(stamp(0))
    e(srd(12, 8, FH * D * 2)); e(srd(20, 28, WS_SIZE))
    PB = 80
    def preg(i, ts):
        return vr(PB + 8 * i + 4 * ts, 4) if i < 14 else f"a[{8*(i-14)+4*ts}:{8*(i-14)+4*ts+3}]"
    def issue(i):
        r = []
        if i < 14:
            for i2 in range(2):
                r += [f"s_add_u32 s33, s34, {(16*i+8*i2)*896}", f"s_add_u32 m0, s37, {i*2048 + i2*1024}",
                      ('v', f"buffer_load_dwordx4 v2, s[12:15], s33 offen lds", i)]
        for ts in range(2):
            r += [f"s_add_u32 s33, s{(35 if i < 14 else 52)+ts}, {(i % 14)*1024}",
                  ('v', f"buffer_load_dwordx4 {preg(i, ts)}, v4, s[20:23], s33 offen", i)]
        return r
    AHEAD = OPT.get("k3_ahead", 4)
    for i in range(AHEAD): e(issue(i))
    e(srd(16, 10, S * D * 2)); e(srd(40, 4, S * D * 2))
    e(lines(TR_ADDR + f"""
    v_add_u32 v9, s37, v14
    s_lshl_b32 s33, s38, 6
    v_xor_b32 v9, s33, v9
    v_xor_b32 v10, 64, v9
    """))
    for r in range(16, 80): e(f"v_mov_b32 v{r}, 0")
    WF = 192
    def rd(i):
        b = WF + 8 * (i & 1)
        return [('l', f"ds_read_b64_tr_b16 {vr(b+4*sub+2*h,2)}, v{9+sub} offset:{(i % 14)*2048 + h*512}", ("w", i)) for sub in range(2) for h in range(2)]
    XR, ST, YR = 208, 216, 220
    ex = lines(f"""
    v_and_b32 v11, 31, v1
    v_mul_u32_u24 v12, 896, v11
    v_lshrrev_b32 v13, 5, v1
    v_lshl_add_u32 v3, v13, 4, v12
    s_mul_i32 s45, s44, {32*896}
    s_lshl_b32 s46, s26, 1
    s_add_u32 s46, s46, s38
    s_lshl_b32 s47, s46, 6
    s_add_u32 s45, s45, s47
    """) + [('v', f"buffer_load_dwordx4 {vr(XR,4)}, v3, s[40:43], s45 offen", "ex"),
            ('v', f"buffer_load_dwordx4 {vr(XR+4,4)}, v3, s[40:43], s45 offen offset:32", "ex")] + lines(f"""
    v_lshlrev_b32 v12, 3, v11
    s_lshl_b32 s47, s44, 8
    s_add_u32 s47, s47, {XST}
    """) + [('v', f"buffer_load_dwordx2 {vr(ST,2)}, v12, s[20:23], s47 offen", "ex")] + lines(f"""
    v_lshrrev_b32 v12, 2, v1
    v_lshlrev_b32 v12, 12, v12
    v_and_b32 v13, 3, v1
    v_lshl_add_u32 v12, v13, 4, v12
    s_lshl_b32 s47, s46, 17
    s_lshl_b32 s48, s44, 6
    s_add_u32 s47, s47, s48
    s_add_u32 s47, s47, {YT}
    s_lshl_b32 s48, s24, 11
    s_add_u32 s48, s48, {YB}
    s_mov_b32 m0, s48
    """) + [('v', "buffer_load_dwordx4 v12, s[20:23], s47 offen lds", "ex"),
            "s_add_u32 s47, s47, 0x10000", "s_add_u32 m0, s48, 1024",
            ('v', "buffer_load_dwordx4 v12, s[20:23], s47 offen lds", "ex")]
    e(('wv', 0)); e(stamp(1))
    e(rd(0))
    nxt = AHEAD
    for i in range(28):
        for rep in range(1 if nxt < 14 else 2):
            if nxt < 28: e(issue(nxt)); nxt += 1
            elif nxt == 28: e(ex); nxt += 1
        if i + 1 < 28:
            if i + 1 < 14: e(('wv', i + 1))
            e(rd(i + 1))
        e(('wvl', i, ("w", i)))
        b = WF + 8 * (i & 1)
        for sub in range(2):
            for ts in range(2):
                acc = 16 + 16 * (2 * sub + ts)
                e(f"v_mfma_f32_32x32x16_bf16 {vr(acc,16)}, {vr(b+4*sub,4)}, {preg(i, ts)}, {vr(acc,16)}")
    e(stamp(2))
    e(lines(f"""
    v_add_u32 v5, s37, v4
    s_xor_b32 s33, s24, 1
    s_mul_i32 s33, s33, {WSZ}
    v_add_u32 v6, s33, v4
    s_xor_b32 s33, s24, 2
    s_mul_i32 s33, s33, {WSZ}
    v_add_u32 v7, s33, v4
    s_xor_b32 s33, s24, 3
    s_mul_i32 s33, s33, {WSZ}
    v_add_u32 v8, s33, v4
    v_lshrrev_b32 v12, 5, v1
    v_bfe_u32 v13, v1, 2, 2
    v_lshl_add_u32 v14, v12, 2, v13
    v_lshlrev_b32 v14, 6, v14
    v_bfe_u32 v15, v1, 4, 1
    v_lshl_add_u32 v14, v15, 5, v14
    v_and_b32 v15, 3, v1
    v_lshl_add_u32 v14, v15, 3, v14
    v_add_u32 v14, s48, v14
    """))
    for j in range(1, 4):
        for g in range(4):
            e(('l', f"ds_write_b128 v5, {vr(16+16*j+4*g,4)} offset:{(j-1)*4096+g*1024}", "rw"))
    e(('wv', "ex"))
    for g in range(4):
        e(('l', f"ds_read_b64_tr_b16 {vr(YR+2*g,2)}, v14 offset:{g*512}", "y"))
    for k2 in range(2):
        e(f"v_permlane32_swap_b32 v{XR+4*k2}, v{XR+4*k2+2}")
        e(f"v_permlane32_swap_b32 v{XR+4*k2+1}, v{XR+4*k2+3}")
    X, Y, T = 128, 144, 160
    for q in range(8):
        e([f"v_lshlrev_b32 v{X+2*q}, 16, v{XR+q}", f"v_and_b32 v{X+2*q+1}, 0xffff0000, v{XR+q}"])
    e([('wl', "y"), "s_barrier"])
    for j in range(1, 4):
        for g in range(4):
            e(('l', f"ds_read_b128 {vr(80+16*(j-1)+4*g,4)}, v{5+j} offset:{(j-1)*4096+g*1024}", ("rr", j)))
    e(lines(f"v_mov_b32 v218, v{ST+1}\nv_mov_b32 v176, {f32(-math.log2(math.e))}\nv_mov_b32 v178, 1.0"))
    for q in range(8):
        e([f"v_lshlrev_b32 v{Y+2*q}, 16, v{YR+q}", f"v_and_b32 v{Y+2*q+1}, 0xffff0000, v{YR+q}"])
    for q in range(8): e(f"v_pk_add_f32 {vr(T+2*q,2)}, {vr(X+2*q,2)}, {vr(ST,2)} op_sel_hi:[1,0] neg_lo:[0,1] neg_hi:[0,1]")
    for q in range(8): e(f"v_pk_mul_f32 {vr(T+2*q,2)}, {vr(T+2*q,2)}, {vr(218,2)} op_sel_hi:[1,0]")
    for q in range(8): e(f"v_pk_mul_f32 {vr(Y+2*q,2)}, {vr(T+2*q,2)}, {vr(Y+2*q,2)}")
    O = 16
    for j in range(1, 4):
        e(('wl', ("rr", j)))
        for q in range(8):
            e(f"v_pk_add_f32 {vr(O+2*q,2)}, {vr(O+2*q,2)}, {vr(80+16*(j-1)+2*q,2)}")
    for q in range(8): e(f"v_pk_mul_f32 {vr(T+2*q,2)}, {vr(O+2*q,2)}, {vr(176,2)} op_sel_hi:[1,0]")
    for q in range(16): e(f"v_exp_f32 v{T+q}, v{T+q}")
    for q in range(8): e(f"v_pk_mul_f32 {vr(O+2*q,2)}, {vr(O+2*q,2)}, {vr(Y+2*q,2)}")
    for q in range(8): e(f"v_pk_add_f32 {vr(T+2*q,2)}, {vr(T+2*q,2)}, {vr(178,2)} op_sel_hi:[1,0]")
    for q in range(16): e(f"v_rcp_f32 v{T+q}, v{T+q}")
    for q in range(8): e(f"v_pk_fma_f32 {vr(T+2*q,2)}, {vr(T+2*q,2)}, {vr(O+2*q,2)}, {vr(X+2*q,2)}")
    P = 96
    for q in range(8): e(f"v_cvt_pk_bf16_f32 v{P+q}, v{T+2*q}, v{T+2*q+1}")
    for k2 in range(2):
        e(f"v_permlane32_swap_b32 v{P+4*k2}, v{P+4*k2+2}")
        e(f"v_permlane32_swap_b32 v{P+4*k2+1}, v{P+4*k2+3}")
    for k2 in range(2):
        e(f"buffer_store_dwordx4 {vr(P+4*k2,4)}, v3, s[16:19], s45 offen offset:{k2*32}")
    for i in range(3, 7): e(stamp(i))
    e(stamp_out(2))
    if DIAG and OPT.get("dbgout"):
        WGD = OPT["dbgout"]
        e(lines(f"""
        s_cmp_lg_u32 s2, {WGD}
        s_cbranch_scc1 {name}_end
        s_cmp_lg_u32 s24, 0
        s_cbranch_scc1 {name}_end
        s_load_dwordx2 s[8:9], s[0:1], 96
        s_waitcnt vmcnt(0)
        v_mov_b32 v1, 0
        """))
        sel = [(0, 0), (0, 1), (0, 2), (0, 3), (0, 4), (0, 5), (0, 7), (1, 0), (1, 1), (1, 2), (1, 7), (2, 0), (2, 1), (2, 2), (2, 7)]
        for i, (kk, st) in enumerate(sel):
            e([f"s_mov_b32 s33, {TSB + kk*0x20000 + WGD*512 + 4*st}", f"buffer_load_dword v{8+i}, v1, s[20:23], s33 offen sc0 sc1"])
        e("s_waitcnt vmcnt(0) lgkmcnt(0)")
        for i in range(len(sel)):
            e([f"v_sub_u32 v{30+i}, v{8+i}, v8", f"global_store_dword v1, v{30+i}, s[8:9] offset:{4*i}"])
    e("s_endpgm")
    e = Em(a)
    e(lines(f"""
    {name}_pf:
    s_sub_u32 s32, s31, 28
    s_lshl_b32 s32, s32, 2
    s_add_u32 s32, s32, s24
    s_xor_b32 s50, s50, 0x400000
    s_mul_i32 s33, s30, {8*56*1024}
    s_add_u32 s33, s33, s50
    s_add_u32 s33, s33, {PF}
    s_mul_i32 s34, s32, {28*1024}
    s_add_u32 s33, s33, s34
    v_lshlrev_b32 v2, 7, v1
    v_lshrrev_b32 v3, 2, v1
    v_and_b32 v4, 3, v1
    v_lshlrev_b32 v4, 7, v4
    v_lshl_add_u32 v3, v3, 12, v4
    s_mul_i32 s34, s32, {28*4096}
    s_lshl_b32 s35, s30, 9
    s_add_u32 s34, s34, s35
    s_add_u32 s34, s34, {YT}
    s_waitcnt lgkmcnt(0)
    """))
    for i in range(8): e(stamp(i))
    e(srd(20, 28, WS_SIZE))
    if OPT["k3_pf"]:
        for i in range(4):
            off = i * 8192 if i < 3 else 28 * 1024 - 8192
            e([f"s_add_u32 s36, s33, {off}", f"buffer_load_dword v{8+i}, v2, s[20:23], s36 offen"])
        e(["buffer_load_dword v12, v3, s[20:23], s34 offen", f"s_add_u32 s34, s34, {12*4096}", "buffer_load_dword v13, v3, s[20:23], s34 offen"])
    e(stamp_out(2))
    e(f"{name}_end:")
    e("s_endpgm")
    return a, YB + 4 * 2048

HEADER = open("recurrent_scan__ssm_conv_h3__mixer_gmlp__prompt.s.ref").read().split("; Override")[0]

def build(kernels, path):
    out = HEADER
    for (name, a, grid, block, lds, vg, acc) in kernels:
        out += f"; @launch kernel={name} grid=({grid},1,1) block=({block},1,1) lds={lds}\n"
    out += '.amdgcn_target "amdgcn-amd-amdhsa--gfx950"\n.text\n'
    for (name, a, grid, block, lds, vg, acc) in kernels:
        out += kernel_header(name) + a.text()
    out += '.section .rodata,"a"\n'
    for (name, a, grid, block, lds, vg, acc) in kernels:
        out += kernel_desc(name, vg, accum=acc)
    open(path, "w").write(out)

if __name__ == "__main__":
    args = sys.argv[1:]
    if "--diag" in args:
        DIAG = True
        args.remove("--diag")
    for x in list(args):
        if "=" in x:
            k, v = x.split("=")
            OPT[k] = float(v) if "." in v else int(v)
            args.remove(x)
    k2, lds2, vg2 = gen_k2("k2_kernel")
    k3, lds3 = gen_k3("k3_kernel")
    ks = [("k1_kernel", gen_k1("k1_kernel"), 256, 256, 163840, 368, 256),
          ("k2_kernel", k2, 256, 512, lds2, max(vg2, 192), None),
          ("k3_kernel", k3, 256, 256, lds3, 228 + 112, 228)]
    build(ks, args[0] if args else "out.s")
```

```python
import sys, struct, math
from asmlib import *

S, D, F, FH = 2048, 448, 1792, 896
Z1F = 0x0000000
Z2F = 0x0400000
PF  = 0x0800000
UR  = 0x1000000
URS = 4096 + 128
YT  = 0x1200000
STATS = 0x1400000
XST = 0x1500000
TSB = 0x1510000
WS_SIZE = 0x1580000
DIAG = False
OPT = dict(k1_touch=0, k1_wsp=1, k2_zpf=1, k2_k3pf=1, ZD=12, NSLOT2=6, k1_wout=1, k1_stf=1, k1_rot=1, k3_pf=1)

def f32(x):
    return "0x%08x" % struct.unpack("<I", struct.pack("<f", x))[0]

class Em:
    def __init__(self, a):
        self.a = a
        self.v = []
        self.l = []
    def _cnt(self, lst, tag, mx):
        tags = tag if isinstance(tag, (list, set)) else [tag]
        idx = [i for i, t in enumerate(lst) if t in tags]
        if not idx: return None
        n = len(lst) - 1 - max(idx)
        return min(n, mx)
    def __call__(self, it):
        if isinstance(it, str):
            self.a(it)
        elif isinstance(it, list):
            for x in it: self(x)
        elif it[0] == 'v':
            self.a(it[1]); self.v.append(it[2])
        elif it[0] == 'l':
            self.a(it[1]); self.l.append(it[2])
        elif it[0] == 'wv':
            n = self._cnt(self.v, it[1], 63)
            if n is not None: self.a(f"s_waitcnt vmcnt({n})")
        elif it[0] == 'wl':
            n = self._cnt(self.l, it[1], 15)
            if n is not None: self.a(f"s_waitcnt lgkmcnt({n})")
        elif it[0] == 'wvl':
            n = self._cnt(self.v, it[1], 63); m = self._cnt(self.l, it[2], 15)
            s = "s_waitcnt"
            if n is None and m is None: return
            if n is not None: s += f" vmcnt({n})"
            if m is not None: s += f" lgkmcnt({m})"
            self.a(s)
        else:
            raise ValueError(it)

def lines(s):
    return [l.strip() for l in s.strip("\n").split("\n") if l.strip()]

def merge(A, B, ratio):
    out = []
    bi = 0
    acc = 0.0
    for it in A:
        out.append(it)
        txt = it if isinstance(it, str) else ""
        if txt.startswith("v_mfma"):
            acc += ratio
            while acc >= 1.0 and bi < len(B):
                out.append(B[bi]); bi += 1; acc -= 1.0
    out += B[bi:]
    return out

def stamp(i):
    if not DIAG: return []
    r = [f"s_memrealtime s[{70+2*i}:{71+2*i}]"]
    if i == 0: r.append("s_memtime s[86:87]")
    if i == 7: r.append("s_memtime s[88:89]")
    return r
def stamp_out(kidx, srdreg=20, wavereg=24):
    if not DIAG: return []
    r = ["s_waitcnt vmcnt(0)"] + stamp(7)
    r += lines(f"""
    s_waitcnt lgkmcnt(0)
    s_mov_b64 exec, -1
    s_lshl_b32 s68, s2, 3
    s_add_u32 s68, s68, s{wavereg}
    s_lshl_b32 s68, s68, 6
    s_add_u32 s68, s68, {TSB + kidx*0x20000}
    v_mov_b32 v1, 0
    """)
    r.append("s_getreg_b32 s90, hwreg(HW_REG_XCC_ID)")
    for i in range(11):
        r.append(f"v_mov_b32 v2, s{70+2*i}")
        r.append(f"buffer_store_dword v2, v1, s[{srdreg}:{srdreg+3}], s68 offen offset:{4*i}")
    return r

def srd(dst, ptr, size):
    return lines(f"""
    s_mov_b32 s{dst}, s{ptr}
    s_and_b32 s{dst+1}, s{ptr+1}, 0xffff
    s_mov_b32 s{dst+2}, {size}
    s_mov_b32 s{dst+3}, 0x20000
    """)

def rbf16(dst, src):
    return [f"v_cvt_pk_bf16_f32 v{dst}, v{src}, v{src}", f"v_and_b32 v{dst}, 0xffff0000, v{dst}"]

def halfsum(v, t):
    return [f"v_mov_b32 v{t}, v{v}", f"v_permlane32_swap_b32 v{v}, v{t}", f"v_add_f32 v{v}, v{v}, v{t}"]

def ln_stats(vsum, vsq, n, vm, vsd, vr_):
    t = vsd
    r = [f"v_mul_f32 v{vsum}, {f32(1.0/n)}, v{vsum}",
         f"v_mul_f32 v{vsq}, {f32(1.0/n)}, v{vsq}",
         f"v_fma_f32 v{t}, -v{vsum}, v{vsum}, v{vsq}",
         f"v_max_f32 v{t}, 0, v{t}"]
    r += rbf16(vm, vsum) + rbf16(t, t)
    r += [f"v_add_f32 v{t}, {f32(1e-5)}, v{t}"] + rbf16(t, t)
    r += [f"v_sqrt_f32 v{t}, v{t}"] + rbf16(t, t)
    r += [f"v_rcp_f32 v{vr_}, v{t}"]
    return r

def code_touch(tagname, sidx, vo, vd, start="k1_kernel", sp=68):
    l = f"Lpc_{tagname}"
    return lines(f"""
    s_getpc_b64 s[{sp}:{sp+1}]
    {l}:
    s_sub_u32 s{sp}, s{sp}, {l}-k1_kernel
    s_subb_u32 s{sp+1}, s{sp+1}, 0
    s_lshl_b32 s99, s{sidx}, 13
    s_add_u32 s99, s99, {start}-k1_kernel
    v_lshl_add_u32 v{vo}, v1, 7, s99
    v_min_u32 v{vo}, code_end-k1_kernel-4, v{vo}
    """) + [('v', f"global_load_dword v{vd}, v{vo}, s[{sp}:{sp+1}]", "code")]

TR_ADDR = """
    v_lshrrev_b32 v12, 5, v1
    v_bfe_u32 v13, v1, 2, 2
    v_lshl_add_u32 v14, v12, 3, v13
    v_lshlrev_b32 v14, 7, v14
    v_bfe_u32 v15, v1, 4, 1
    v_lshl_add_u32 v14, v15, 5, v14
    v_and_b32 v15, 3, v1
    v_lshl_add_u32 v14, v15, 3, v14
    v_bfe_u32 v15, v1, 3, 1
    v_lshl_add_u32 v14, v15, 6, v14
"""

def gen_k1(name):
    a = Asm(); e = Em(a)
    STF = ["", " sc1", " nt", " sc0 sc1"][OPT.get("k1_stf", 0)]
    WR = 114688
    CSP = WR + 5 * 8192
    e(lines(f"""
    s_cmp_ge_u32 s2, 256
    s_cbranch_scc1 {name}_end
    s_load_dwordx2 s[62:63], s[0:1], 64
    s_load_dwordx2 s[64:65], s[0:1], 80
    s_load_dwordx2 s[66:67], s[0:1], 32
    s_cmp_ge_u32 s2, 224
    s_cbranch_scc1 {name}_side
    s_load_dwordx2 s[4:5], s[0:1], 0
    s_load_dwordx2 s[6:7], s[0:1], 56
    s_load_dwordx4 s[8:11], s[0:1], 96
    s_memrealtime s[60:61]
    v_lshrrev_b32 v1, 6, v0
    v_readfirstlane_b32 s24, v1
    v_and_b32 v1, 63, v0
    s_and_b32 s28, s2, 7
    s_lshr_b32 s29, s2, 3
    s_mul_i32 s30, s29, 37
    s_lshr_b32 s30, s30, 8
    s_mul_i32 s31, s30, 7
    s_sub_u32 s31, s29, s31
    s_lshr_b32 s25, s28, 1
    s_lshl_b32 s25, s25, 2
    s_add_u32 s25, s25, s30
    s_and_b32 s26, s28, 1
    s_mul_i32 s26, s26, 7
    s_add_u32 s26, s26, s31
    v_lshrrev_b32 v11, 3, v1
    v_and_b32 v12, 7, v1
    v_lshrrev_b32 v13, 4, v1
    v_mul_u32_u24 v14, 896, v11
    v_xor_b32 v15, v12, v13
    v_lshl_add_u32 v2, v15, 4, v14
    v_xor_b32 v15, 4, v15
    v_lshl_add_u32 v3, v15, 4, v14
    v_add_u32 v3, {8*896}, v3
    v_mul_u32_u24 v14, 3584, v11
    v_and_b32 v15, 1, v13
    v_lshlrev_b32 v15, 2, v15
    v_xor_b32 v15, v12, v15
    v_lshl_add_u32 v4, v15, 4, v14
    v_add_u32 v9, {8*3584}, v4
    s_lshl_b32 s34, s25, 2
    s_add_u32 s34, s34, s24
    s_mul_i32 s35, s34, {32*896}
    s_mul_i32 s36, s24, {16*3584}
    s_lshl_b32 s37, s26, 7
    s_add_u32 s38, s36, s37
    s_add_u32 s37, s38, {FH*2}
    s_lshl_b32 s39, s24, 12
    s_lshl_b32 s47, s24, 11
    s_lshl_b32 s49, s29, 2
    s_add_u32 s49, s49, s24
    s_lshl_b32 s27, s30, 1
    s_add_u32 s27, s27, s31
    """))
    if not OPT["k1_rot"]: e("s_mov_b32 s27, 0")
    e(lines("s_sub_u32 s33, s27, 7\ns_cmp_ge_u32 s27, 7\ns_cselect_b32 s27, s33, s27\ns_lshl_b32 s92, s27, 7"))
    for i in range(1, 7):
        e(lines(f"s_add_u32 s{92+i}, s{91+i}, 128\ns_cmp_eq_u32 s{92+i}, 896\ns_cselect_b32 s{92+i}, 0, s{92+i}"))
    e("s_waitcnt lgkmcnt(0)")
    e(stamp(0))
    e(srd(12, 4, S * D * 2)); e(srd(16, 6, D * F * 2))
    def dma_x(i):
        r = []
        for i4 in range(4):
            g = ([f"s_add_u32 s32, s35, s{92+i}"] if i4 == 0 else [f"s_add_u32 s32, s32, {16*896}"] if i4 == 2 else [])
            g = [f"s_add_u32 m0, s39, {i*16384 + i4*1024}"] + g + [('v', f"buffer_load_dwordx4 v{2 + (i4 & 1)}, s[12:15], s32 offen lds", ("x", i))]
            r.append(g)
        return r
    WLOC = [WR + i * 8192 for i in range(5)] + [0, 8192, WR, 16384, 24576, WR + 8192, 32768, 40960, WR + 16384]
    def dma_w(st):
        base = 37 if st < 7 else 38
        r = []
        for i2 in range(2):
            r.append([f"s_add_u32 m0, s47, {WLOC[st] + i2*1024}"] +
                     ([f"s_mul_i32 s43, s{92 + st % 7}, 1792", f"s_add_u32 s43, s43, s{base}"] if i2 == 0 else []) +
                     [('v', f"buffer_load_dwordx4 v{4 if i2 == 0 else 9}, s[16:19], s43 offen lds", ("w", st))])
        return r
    NI = OPT.get("k1_init", 3)
    lbl = name + "_nononce"
    e(lines(f"""
    s_or_b32 s33, s26, s24
    s_cmp_lg_u32 s33, 0
    s_cbranch_scc1 {lbl}
    s_or_b32 s61, s61, 0x80000000
    v_mov_b32 v12, s60
    v_mov_b32 v13, s61
    s_lshl_b32 s32, s25, 3
    v_mov_b32 v14, s32
    global_store_dwordx2 v14, v[12:13], s[8:9] sc0 sc1
    {lbl}:
    """))
    for i in range(NI):
        e(dma_x(i))
        if i < 5: e(dma_w(i))
    e(srd(20, 10, WS_SIZE))
    XA, WA = 5, 208
    e(lines(f"""
    v_and_b32 v11, 31, v1
    v_lshrrev_b32 v12, 5, v1
    v_bfe_u32 v13, v1, 1, 3
    v_xor_b32 v13, v13, v12
    v_lshlrev_b32 v14, 7, v11
    v_add_u32 v14, s39, v14
    v_lshl_add_u32 v5, v13, 4, v14
    s_lshl_b32 s32, s24, 5
    v_xor_b32 v5, s32, v5
    v_xor_b32 v6, 32, v5
    v_xor_b32 v7, 64, v5
    v_xor_b32 v8, 96, v5
    """ + TR_ADDR + f"""
    v_add_u32 v{WA}, s47, v14
    """))
    for t in range(1, 4): e(f"v_xor_b32 v{WA+t}, {t << 11}, v{WA}")
    for t in range(4): e(f"v_xor_b32 v{WA+4+t}, 64, v{WA+t}")
    for t in range(8): e(f"v_add_u32 v{WA+8+t}, {WR}, v{WA+t}")
    ACC = [16, 48]
    WFB = 80
    ONE = 104
    SUMA, GRAM, CSA = 108, 124, 140
    Z2P = 172
    TMP = 188
    GRN = 196
    BM, AC = 200, 204
    Z1P = 224
    NON = 240
    VK0, VK1, VSD, VMX = 242, 244, 246, 248
    SX = 252
    GR = 108
    for q in range(4): e(f"v_mov_b32 v{ONE+q}, 0x3f803f80")
    e(lines(f"""
    s_mov_b32 s48, 0x3f803f80
    s_mov_b32 s52, 0xaaaaaaaa
    s_mov_b32 s53, 0xaaaaaaaa
    s_mov_b32 s54, 0xcccccccc
    s_mov_b32 s55, 0xcccccccc
    s_mov_b32 s56, 0xff00ff00
    s_mov_b32 s57, 0xff00ff00
    s_mov_b32 s58, 0xffff0000
    s_mov_b32 s59, 0xffff0000
    s_mov_b32 s44, 0x0f0f0f0f
    s_mov_b32 s45, 0xf0f0f0f0
    s_mov_b32 s40, 0
    s_mov_b32 s41, -1
    """))
    def xa(k): return f"a[{4*(k%28)}:{4*(k%28)+3}]"
    def reads(k):
        st, t = k >> 2, k & 3
        r = []
        if st < 7:
            if k == 16: r += [f"v_add_u32 v{5+q}, 0x10000, v{5+q}" for q in range(4)]
            r.append(('l', f"ds_read_b128 {xa(k)}, v{5+t} offset:{(st & 3)*16384}", ("f", k)))
        loc = WLOC[st]; reg = 0
        if loc >= WR: loc -= WR; reg = 8
        for sub in range(2):
            for h in range(2):
                r.append(('l', f"ds_read_b64_tr_b16 {vr(WFB+8*(k%3)+4*sub+2*h,2)}, v{WA+reg+4*sub+t} offset:{loc + h*512}", ("f", k)))
        return r
    def mf(d, A_, B_, first):
        return f"v_mfma_f32_32x32x16_bf16 {vr(d,16)}, {A_}, {B_}, {'0' if first else vr(d,16)}"
    def compute(k):
        p = k // 28
        b = WFB + 8 * (k % 3)
        r = [mf(ACC[p] + 16 * sub, vr(b + 4 * sub, 4), xa(k), k % 28 == 0) for sub in range(2)]
        def m4(d, A_, B_, first):
            return f"v_mfma_f32_4x4x4_16b_bf16 {vr(d,4)}, {A_}, {B_}, {'0' if first else vr(d,4)}"
        if p == 0 and (k == 0 or not OPT.get("x_nodots")):
            x2 = [f"a[{4*k+2*q}:{4*k+2*q+1}]" for q in range(2)]
            r.append([m4(SUMA + 4 * q, vr(ONE, 2), x2[q], k == 0) for q in range(2)])
            r.append([m4(GRAM + 4 * q, x2[q], x2[q], k == 0) for q in range(2)])
        if k % 4 == 0 and (k % 28 == 0 or not OPT.get("x_nocs")):
            r.append([m4(CSA + 8 * sub + 4 * q, vr(ONE, 2), vr(b + 4 * sub + 2 * q, 2), k % 28 == 0) for sub in range(2) for q in range(2)])
        return r
    sched = {k: [] for k in range(28)}
    rest = []
    for st in range(NI, 7):
        rest += [(0, g) for g in dma_x(st)]
        if st < 5: rest += [(0, g) for g in dma_w(st)]
        elif NI <= st: rest += [(6, g) for g in dma_w(st)]
    for st in range(5, 14):
        if st < 7 and NI <= st: continue
        rest += [(6 + 4 * ((st - 5) // 3), g) for g in dma_w(st)]
    RATE = OPT.get("k1_rate", 2)
    kk = 0; c = 0
    for (k0, g) in rest:
        if kk < k0: kk = k0; c = 0
        sched[kk].append(g)
        c += 1
        if c >= RATE: kk += 1; c = 0
    def sync(st):
        return [('wv', [("x", st), ("w", st)]), "s_barrier"]
    e(sync(0)); e(stamp(1))
    e(reads(0)); e(reads(1))
    for k in range(28):
        cm = compute(k)
        e(('wl', ("f", k)))
        e(cm[:2])
        if k + 2 < 28:
            if (k + 2) % 4 == 0: e(sync((k + 2) >> 2))
            e(reads(k + 2))
        e(cm[2:3])
        e(sched[k][:1])
        e(cm[3:4])
        e(sched[k][1:])
        e(cm[4:])
        if k == 23:
            e([f"s_lshl_b32 s33, s25, 3", "v_mov_b32 v11, s33", ('v', f"global_load_dwordx2 {vr(NON,2)}, v11, s[8:9] sc0 sc1", "nonce")])
    e(stamp(2))
    def cs_write(p):
        return lines(f"""
        s_lshl_b32 s32, s24, 2
        s_add_u32 s32, s32, {CSP + p*1024}
        v_lshl_add_u32 v11, v1, 4, s32
        v_add_f32 v12, v{CSA}, v{CSA+4}
        v_add_f32 v13, v{CSA+8}, v{CSA+12}
        v_permlane32_swap_b32 v12, v13
        v_add_f32 v12, v12, v13
        v_cvt_pk_bf16_f32 v13, v12, v12
        v_and_b32 v13, 0xffff0000, v13
        v_sub_f32 v12, v12, v13
        v_cvt_pk_bf16_f32 v12, v13, v12
        """) + [('l', f"ds_write_b32 v11, v12", "csw")]
    def cs_apply(p, mid):
        r = [f"v_and_b32 v11, 31, v1", f"v_lshlrev_b32 v11, 4, v11", f"v_add_u32 v11, {CSP + p*1024}, v11",
             ('l', f"ds_read_b128 {vr(AC,4)}, v11", "csr"), ('l', f"ds_read_b128 {vr(TMP,4)}, v11 offset:512", "csr")]
        r += mid
        r += [('wl', "csr"), mf(ACC[p], vr(AC, 4), vr(BM, 4), False), mf(ACC[p] + 16, vr(TMP, 4), vr(BM, 4), False)]
        return r
    c0 = -2.0 * math.sqrt(2.0 / math.pi) * math.log2(math.e)
    c1 = c0 * 0.044715
    def gelu_pack(p, dst):
        r = []
        G = 4
        for g0 in range(0, 16, G):
            prs = range(g0, g0 + G)
            z = {q: ACC[p] + 2*q for q in prs}
            t = {q: TMP + 2*(q - g0) for q in prs}
            for q in prs: r.append(f"v_pk_mul_f32 {vr(t[q],2)}, {vr(z[q],2)}, {vr(z[q],2)}")
            for q in prs: r.append(f"v_pk_fma_f32 {vr(t[q],2)}, {vr(t[q],2)}, {vr(VK1,2)}, {vr(VK0,2)} op_sel_hi:[1,0,0]")
            for q in prs: r.append(f"v_pk_mul_f32 {vr(t[q],2)}, {vr(t[q],2)}, {vr(z[q],2)}")
            for q in prs:
                r.append(f"v_exp_f32 v{t[q]}, v{t[q]}")
                r.append(f"v_exp_f32 v{t[q]+1}, v{t[q]+1}")
            for q in prs: r.append(f"v_pk_fma_f32 {vr(t[q],2)}, {vr(t[q],2)}, {vr(VSD,2)}, {vr(VSD,2)} op_sel_hi:[1,0,0]")
            for q in prs:
                r.append(f"v_rcp_f32 v{t[q]}, v{t[q]}")
                r.append(f"v_rcp_f32 v{t[q]+1}, v{t[q]+1}")
            for q in prs: r.append(f"v_pk_mul_f32 {vr(z[q],2)}, {vr(z[q],2)}, {vr(t[q],2)}")
            for q in prs: r.append(f"v_cvt_pk_bf16_f32 v{dst+q}, v{z[q]}, v{z[q]+1}")
        return r
    def gelu_scalar(p, dst):
        r = []
        G = 8
        for g0 in range(0, 32, G):
            es = range(g0, g0 + G)
            z = {q: ACC[p] + q for q in es}
            t = {q: TMP + (q - g0) for q in es}
            for q in es: r.append(f"v_mul_f32 v{t[q]}, v{z[q]}, v{z[q]}")
            for q in es: r.append(f"v_fma_f32 v{t[q]}, v{t[q]}, v{VK1}, v{VK0}")
            for q in es: r.append(f"v_mul_f32 v{t[q]}, v{t[q]}, v{z[q]}")
            for q in es: r.append(f"v_exp_f32 v{t[q]}, v{t[q]}")
            for q in es: r.append(f"v_fma_f32 v{t[q]}, v{t[q]}, v{VSD}, v{VSD}")
            for q in es: r.append(f"v_rcp_f32 v{t[q]}, v{t[q]}")
            for q in es: r.append(f"v_mul_f32 v{z[q]}, v{z[q]}, v{t[q]}")
            for q in es:
                if q & 1: r.append(f"v_cvt_pk_bf16_f32 v{dst+q//2}, v{z[q-1]}, v{z[q]}")
        return r
    e(cs_write(0))
    e([('wl', "csw"), "s_barrier"])
    xst = [f"v_add_f32 v{GRAM+i}, v{GRAM+i}, v{GRAM+4+i}" for i in range(4)]
    xst += [f"v_add_f32 v{SUMA}, v{SUMA}, v{SUMA+4}"]
    for i in range(2): xst.append(f"v_cndmask_b32 v{GRAM+i}, v{GRAM+2*i}, v{GRAM+2*i+1}, s[52:53]")
    xst.append(f"v_cndmask_b32 v{GRAM}, v{GRAM}, v{GRAM+1}, s[54:55]")
    xst += halfsum(GRAM, 14) + halfsum(SUMA, 15)
    xst += ln_stats(SUMA, GRAM, D, VMX, VSD, VMX + 1)
    xst += lines(f"""
    v_lshrrev_b32 v14, 16, v{VMX}
    v_or_b32 v14, v14, v{VMX}
    v_xor_b32 v14, 0x80008000, v14
    v_cndmask_b32 v{BM}, v14, 0, s[40:41]
    v_cndmask_b32 v{BM+1}, v14, 0, s[40:41]
    v_cndmask_b32 v{BM+2}, v14, 0, s[40:41]
    v_cndmask_b32 v{BM+3}, v14, 0, s[40:41]
    """)
    consts = lines(f"""
    v_mul_f32 v{VK0}, {f32(c0)}, v{VMX+1}
    v_mul_f32 v{VK1}, v{VMX+1}, v{VMX+1}
    v_mul_f32 v{VK1}, v{VK1}, v{VMX+1}
    v_mul_f32 v{VK1}, {f32(c1)}, v{VK1}
    """)
    touches = []
    NL = OPT.get("k1_nl", 3)
    if OPT["k1_wsp"]:
        touches += srd(52, 62, S * S * 2) + lines(f"""
        v_bfe_u32 v12, v1, {NL}, {6-NL}
        v_and_b32 v12, {(128 >> NL) // 8 - 1 if False else 1}, v12
        v_and_b32 v13, {(1 << NL) - 1}, v1
        v_lshlrev_b32 v13, 7, v13
        v_lshl_add_u32 v12, v12, 12, v13
        s_lshl_b32 s32, s28, 20
        s_lshl_b32 s33, s49, 13
        s_add_u32 s32, s32, s33
        """)
        touches += [('v', "buffer_load_dword v2, v12, s[52:55], s32 offen", "touch2")]
    MERGE = OPT.get("k1_merge", 0)
    e(cs_apply(0, xst))
    e(consts + touches)
    B = gelu_scalar(0, Z2P) if MERGE else gelu_pack(0, Z2P)
    dots = []
    for q in range(16):
        for (acc, s0) in ((SUMA, "s48"), (SUMA + 4, f"v{Z2P+q}")):
            if q < 4: dots.append(f"v_dot2_f32_bf16 v{acc+q}, {s0}, v{Z2P+q}, 0")
            else: dots.append(f"v_dot2c_f32_bf16 v{acc+(q&3)}, {s0}, v{Z2P+q}")
    B.append(dots)
    def sum4(dst, b):
        return [f"v_add_f32 v{b}, v{b}, v{b+1}", f"v_add_f32 v{b+2}, v{b+2}, v{b+3}", f"v_add_f32 v{dst}, v{b}, v{b+2}"]
    B += sum4(GRN, SUMA) + sum4(GRN + 2, SUMA + 4)
    B += halfsum(GRN, 14) + halfsum(GRN + 2, 15)
    lr, lo = name + "_nretry", name + "_nok"
    pub = [('wv', "nonce")] + lines(f"""
    s_mov_b32 s50, 0
    {lr}:
    v_readfirstlane_b32 s51, v{NON+1}
    s_cmp_lg_u32 s51, 0
    s_cbranch_scc1 {lo}
    s_add_u32 s50, s50, 1
    s_cmp_gt_u32 s50, 0x100000
    s_cbranch_scc1 {lo}
    s_sleep 1
    s_lshl_b32 s32, s25, 3
    v_mov_b32 v11, s32
    global_load_dwordx2 {vr(NON,2)}, v11, s[8:9] sc0 sc1
    s_waitcnt vmcnt(0)
    s_branch {lr}
    {lo}:
    v_mov_b32 v{GRN+1}, v{NON}
    v_mov_b32 v{GRN+3}, v{NON+1}
    s_mul_i32 s42, s34, {14*512}
    s_add_u32 s42, s42, {STATS}
    s_lshl_b32 s32, s26, 9
    s_add_u32 s32, s32, s42
    v_and_b32 v11, 31, v1
    v_lshlrev_b32 v11, 4, v11
    """) + [('v', f"buffer_store_dwordx4 {vr(GRN,4)}, v11, s[20:23], s32 offen sc0 sc1", "pub")] + stamp(3)
    B.append(pub)
    TB = 49152
    light = lines(f"""
    v_and_b32 v15, 31, v1
    v_lshlrev_b32 v15, 4, v15
    v_lshrrev_b32 v14, 5, v1
    v_mul_u32_u24 v14, 3584, v14
    v_add_u32 v15, v15, v14
    v_and_b32 v5, 31, v1
    v_lshlrev_b32 v6, 7, v5
    v_add_u32 v6, s39, v6
    v_add_u32 v6, {TB}, v6
    v_and_b32 v7, 1, v1
    v_lshrrev_b32 v8, 5, v1
    v_xor_b32 v7, v7, v8
    v_bfe_u32 v8, v1, 1, 1
    v_lshl_or_b32 v7, v8, 3, v7
    v_bfe_u32 v8, v1, 3, 1
    v_lshl_or_b32 v7, v8, 2, v7
    v_bfe_u32 v8, v1, 2, 1
    v_lshl_or_b32 v7, v8, 1, v7
    v_lshl_add_u32 v250, v7, 3, v6
    v_lshrrev_b32 v5, 5, v1
    v_bfe_u32 v6, v1, 2, 2
    v_lshl_add_u32 v6, v5, 3, v6
    v_lshlrev_b32 v6, 7, v6
    v_add_u32 v6, s39, v6
    v_add_u32 v6, {TB}, v6
    v_and_b32 v7, 3, v1
    v_bfe_u32 v8, v1, 4, 1
    v_xor_b32 v8, v8, v5
    v_lshl_or_b32 v7, v8, 2, v7
    v_bfe_u32 v8, v1, 2, 1
    v_xor_b32 v7, v7, v8
    v_bfe_u32 v8, v1, 3, 1
    v_lshl_or_b32 v7, v8, 3, v7
    v_lshl_add_u32 v251, v7, 3, v6
    v_lshlrev_b32 v10, 4, v1
    """)
    for q in range(16):
        t = 16 + 2 * q
        light += [f"v_lshlrev_b32 v{t}, 16, v{Z2P+q}", f"v_and_b32 v{t+1}, 0xffff0000, v{Z2P+q}"]
    A = [[('wv', ("w", 13)), "s_barrier"]] + reads(28) + reads(29)
    for k in range(28, 56):
        cm = compute(k)
        A.append(('wl', ("f", k)))
        A += cm[:1]
        if k + 2 < 56: A += reads(k + 2)
        A += cm[1:]
    if MERGE: e(merge(A, B + light, OPT.get("k1_ratio", 6.0)))
    else:
        e(B); e(merge(A, light, 1.5))
    e(stamp(4))
    def gran_loads():
        return [('v', f"buffer_load_dwordx4 {vr(GR+4*i,4)}, v15, s[20:23], s42 offen offset:{i*512} sc0 sc1", "gr") for i in range(7)]
    e(cs_write(1))
    e([('wl', "csw"), "s_barrier"])
    e(cs_apply(1, gran_loads() + lines(f"""
    s_lshl_b32 s32, s26, 7
    s_add_u32 s32, s32, s34
    s_lshl_b32 s32, s32, 11
    s_add_u32 s33, s32, {64*2048}
    """)))
    for sub in range(2):
        for g in range(4):
            e(f"v_xor_b32 v{80+4*sub+g}, {(8*sub+2*g) << 3}, v250")
    for sub in range(2):
        for h in range(2):
            e(f"v_xor_b32 v{88+2*sub+h}, {(8*sub+2*h) << 3}, v251")
    g1 = gelu_pack(1, Z1P)
    half = len(g1) // 2
    for sub in range(2):
        e(g1[sub*half:(sub+1)*half])
        for h in range(2):
            e(('v', f"buffer_store_dwordx4 {vr(Z1P+8*sub+4*h,4)}, v10, s[20:23], s{32+sub} offen offset:{h*1024}{STF}", "z1"))
    e(stamp(5))
    lr, lo = name + "_gretry", name + "_gok"
    e(["s_mov_b32 s50, 0", ('wv', "gr"), f"{lr}:"])
    e(lines(f"v_xor_b32 v12, v{GR+1}, v{NON}\nv_xor_b32 v13, v{GR+3}, v{NON+1}\nv_or_b32 v12, v12, v13"))
    for i in range(1, 7):
        e(lines(f"v_xor_b32 v13, v{GR+4*i+1}, v{NON}\nv_xor_b32 v14, v{GR+4*i+3}, v{NON+1}\nv_or3_b32 v12, v12, v13, v14"))
    e(lines(f"""
    v_cmp_ne_u32 vcc, 0, v12
    s_cbranch_vccz {lo}
    s_add_u32 s50, s50, 1
    s_cmp_gt_u32 s50, 0x100000
    s_cbranch_scc1 {lo}
    s_sleep 1
    """))
    e(gran_loads())
    e(lines(f"s_waitcnt vmcnt(0)\ns_branch {lr}\n{lo}:"))
    e(stamp(6))
    for c in (0, 2):
        e([f"v_add3_u32 v12, 0, 0, 0"] if False else [])
        e([f"v_add_f32 v{GR+c}, v{GR+c}, v{GR+4+c}", f"v_add_f32 v{GR+8+c}, v{GR+8+c}, v{GR+12+c}", f"v_add_f32 v{GR+16+c}, v{GR+16+c}, v{GR+20+c}"])
    for c in (0, 2):
        e([f"v_add_f32 v{GR+c}, v{GR+c}, v{GR+8+c}", f"v_add_f32 v{GR+16+c}, v{GR+16+c}, v{GR+24+c}"])
    for c in (0, 2):
        e(f"v_add_f32 v{GR+c}, v{GR+c}, v{GR+16+c}")
    e(halfsum(GR, 13) + halfsum(GR + 2, 14))
    VM2, VR2 = 252, 254
    e(ln_stats(GR, GR + 2, FH, VM2, 13, VR2))
    e([f"v_mul_f32 v{VM2}, v{VM2}, v{VR2}", f"v_sub_f32 v{VM2}, 0, v{VM2}"])
    e(lines(f"""
    s_lshl_b32 s32, s26, 8
    s_lshl_b32 s33, s34, 1
    s_add_u32 s32, s32, s33
    s_lshl_b32 s32, s32, 10
    s_add_u32 s32, s32, {Z2F}
    s_add_u32 s33, s32, {128*1024}
    """))
    for sub in range(2):
        for q in range(8 * sub, 8 * sub + 8):
            t = 16 + 2 * q
            e(f"v_pk_fma_f32 {vr(t,2)}, {vr(t,2)}, {vr(VR2,2)}, {vr(VM2,2)} op_sel_hi:[1,0,0]")
        for q in range(8 * sub, 8 * sub + 8):
            t = 16 + 2 * q
            e(f"v_cvt_pk_bf16_f32 v{Z2P+q}, v{t}, v{t+1}")
            if q & 1: e(('l', f"ds_write_b64 v{80+(q>>1)}, {vr(Z2P+q-1,2)}", ("tw", sub)))
        for ks2 in range(2):
            for h in range(2):
                e(('l', f"ds_read_b64_tr_b16 {vr(140+8*sub+4*ks2+2*h,2)}, v{88+2*sub+h} offset:{(16*ks2+4*h)*128}", ("tr", sub, ks2)))
    for sub in range(2):
        for ks2 in range(2):
            e(('wl', ("tr", sub, ks2)))
            e(f"buffer_store_dwordx4 {vr(140+8*sub+4*ks2,4)}, v10, s[20:23], s{32+sub} offen offset:{ks2*1024}{STF}")
    lx = name + "_noxst"
    e(lines(f"""
    s_cmp_lg_u32 s26, 0
    s_cbranch_scc1 {lx}
    v_and_b32 v11, 31, v1
    v_lshlrev_b32 v11, 3, v11
    s_lshl_b32 s32, s34, 8
    s_add_u32 s32, s32, {XST}
    buffer_store_dwordx2 {vr(VMX,2)}, v11, s[20:23], s32 offen
    {lx}:
    """))
    e(stamp_out(0))
    e("s_endpgm")
    e = Em(a)
    e(lines(f"""
    {name}_side:
    s_load_dwordx4 s[4:7], s[0:1], 8
    s_load_dwordx2 s[8:9], s[0:1], 24
    s_load_dwordx2 s[10:11], s[0:1], 104
    s_load_dwordx2 s[44:45], s[0:1], 72
    s_load_dwordx2 s[46:47], s[0:1], 40
    v_lshrrev_b32 v1, 6, v0
    v_readfirstlane_b32 s24, v1
    v_and_b32 v1, 63, v0
    s_sub_u32 s25, s2, 224
    s_lshl_b32 s25, s25, 2
    s_add_u32 s25, s25, s24
    s_lshl_b32 s26, s25, 4
    s_mul_i32 s27, s26, 896
    v_lshlrev_b32 v2, 4, v1
    v_add_u32 v2, s27, v2
    v_add_u32 v3, {(-3*896) & 0xffffffff}, v2
    v_add_u32 v4, {(-2*896) & 0xffffffff}, v2
    v_add_u32 v5, {(-1*896) & 0xffffffff}, v2
    v_lshlrev_b32 v6, 6, v1
    s_lshl_b32 s33, s24, 1
    s_sub_u32 s33, 6, s33
    v_and_b32 v7, 7, v1
    v_xor_b32 v7, s33, v7
    v_lshlrev_b32 v7, 4, v7
    v_lshl_add_u32 v7, v1, 10, v7
    s_sub_u32 s98, s2, 224
    s_lshr_b32 s98, s98, 3
    s_lshl_b32 s98, s98, 2
    s_add_u32 s98, s98, s24
    """))
    if OPT.get("code_pf", 1): e(code_touch("k1", 98, 238, 239))
    e(lines("""
    v_cmp_gt_u32 vcc, 56, v1
    s_and_b64 exec, exec, vcc
    s_waitcnt lgkmcnt(0)
    """))
    for i in range(8): e(stamp(i))
    e(srd(12, 4, S * D * 2)); e(srd(16, 6, S * D * 2)); e(srd(28, 8, D * 4 * 2)); e(srd(20, 10, WS_SIZE))
    KR, VRW, WRAW, WT, KW, TMP2 = 8, 84, 148, 164, 196, 228
    for i in range(4):
        e(('v', f"buffer_load_dwordx4 {vr(WRAW+4*i,4)}, v6, s[28:31], 0 offen offset:{16*i}", "w"))
    for r in range(3):
        e(('v', f"buffer_load_dwordx4 {vr(KR+4*r,4)}, v{3+r}, s[12:15], 0 offen", "h"))
    def ld(r):
        return [f"s_mov_b32 s32, {r*896}",
                ('v', f"buffer_load_dwordx4 {vr(KR+4*(r+3),4)}, v2, s[12:15], s32 offen", ("r", r)),
                ('v', f"buffer_load_dwordx4 {vr(VRW+4*r,4)}, v2, s[16:19], s32 offen", ("r", r))]
    AH = OPT.get('side_ah', 8)
    for r in range(AH): e(ld(r))
    e(('wv', "w"))
    for c in range(8):
        e([f"v_lshlrev_b32 v{WT+0*8+c}, 16, v{WRAW+2*c}", f"v_and_b32 v{WT+1*8+c}, 0xffff0000, v{WRAW+2*c}",
           f"v_lshlrev_b32 v{WT+2*8+c}, 16, v{WRAW+2*c+1}", f"v_and_b32 v{WT+3*8+c}, 0xffff0000, v{WRAW+2*c+1}"])
    def unpack(dst, src):
        r = []
        for q in range(4):
            r += [f"v_lshlrev_b32 v{dst+2*q}, 16, v{src+q}", f"v_and_b32 v{dst+2*q+1}, 0xffff0000, v{src+q}"]
        return r
    e(('wv', "h"))
    e(stamp(1))
    for r in range(3): e(unpack(KW + 8 * (r % 4), KR + 4 * r))
    outreg = lambda c: (148 + 4*c) if c < 4 else (240 + 4*(c-4))
    for r in range(16):
        if r + AH < 16: e(ld(r + AH))
        e(('wv', ("r", r)))
        e(unpack(KW + 8 * ((r + 3) % 4), KR + 4 * (r + 3)))
        acc = TMP2 if (r & 1) == 0 else KR + 4 * (r & ~1)
        for q in range(4):
            e(f"v_pk_mul_f32 {vr(acc+2*q,2)}, {vr(KW+8*((r+0)%4)+2*q,2)}, {vr(WT+3*8+2*q,2)}")
        for j in (2, 1, 0):
            for q in range(4):
                e(f"v_pk_fma_f32 {vr(acc+2*q,2)}, {vr(KW+8*((r+3-j)%4)+2*q,2)}, {vr(WT+j*8+2*q,2)}, {vr(acc+2*q,2)}")
        vt = KW + 8 * (r % 4)
        e(unpack(vt, VRW + 4 * r))
        for q in range(4):
            e(f"v_pk_mul_f32 {vr(acc+2*q,2)}, {vr(acc+2*q,2)}, {vr(vt+2*q,2)}")
        if r & 1:
            q = 3 - ((r & 7) >> 1)
            for c in range(8):
                e(f"v_cvt_pk_bf16_f32 v{outreg(c)+q}, v{acc+c}, v{TMP2+c}")
        if (r & 7) == 7:
            e(f"v_xor_b32 v3, {16 if r == 7 else 0}, v7")
            for c in range(8):
                e(('l', f"ds_write_b128 v3, {vr(outreg(c),4)} offset:{c*128}", "tw"))
    e(["s_mov_b64 exec, -1", ('wl', "tw"), "s_barrier"])
    e(lines(f"""
    v_lshrrev_b32 v4, 3, v1
    v_mul_u32_u24 v4, {URS}, v4
    v_and_b32 v5, 7, v1
    v_lshl_add_u32 v4, v5, 4, v4
    s_sub_u32 s33, s2, 224
    s_lshl_b32 s33, s33, 7
    s_sub_u32 s33, {UR + 4096 - 128}, s33
    s_mul_i32 s34, s24, {8*URS}
    s_add_u32 s33, s33, s34
    s_lshl_b32 s34, s24, 10
    v_lshl_add_u32 v5, v1, 4, s34
    s_lshl_b32 s34, s24, 4
    v_xor_b32 v5, s34, v5
    v_xor_b32 v6, 64, v5
    """))
    for i in range(14):
        e(('l', f"ds_read_b128 {vr(8+4*i,4)}, v{5 + (i & 1)} offset:{i*4096}", ("rd", i)))
    for i in range(14):
        e(('wl', ("rd", i)))
        e(f"buffer_store_dwordx4 {vr(8+4*i,4)}, v4, s[20:23], s33 offen{STF}")
        if i < 13: e(f"s_add_u32 s33, s33, {32*URS}")
    if OPT["k1_wsp"]:
        e(srd(52, 62, S * S * 2))
        e(lines("s_and_b32 s28, s2, 7\ns_lshr_b32 s49, s2, 3\ns_lshl_b32 s49, s49, 2\ns_add_u32 s49, s49, s24"))
        e(lines(f"""
        v_bfe_u32 v236, v1, {NL}, {6-NL}
        v_and_b32 v236, {(128 >> NL) // 8 - 1 if False else 1}, v236
        v_and_b32 v237, {(1 << NL) - 1}, v1
        v_lshlrev_b32 v237, 7, v237
        v_lshl_add_u32 v236, v236, 12, v237
        s_lshl_b32 s32, s28, 20
        s_lshl_b32 s33, s49, 13
        s_add_u32 s32, s32, s33
        """))
        e("buffer_load_dword v238, v236, s[52:55], s32 offen")
    e(srd(52, 44, S * 2)); e(srd(56, 46, D * 2))
    e(["v_lshlrev_b32 v3, 7, v1", "buffer_load_dword v2, v3, s[52:55], 0 offen", "buffer_load_dword v7, v3, s[56:59], 0 offen"])
    e(stamp(6))
    e(stamp_out(0))
    e(f"{name}_end:")
    e("s_endpgm")
    return a

def gen_k2(name):
    a = Asm(); e = Em(a)
    NSLOT = OPT["NSLOT2"]; ZD = OPT["ZD"]
    PST = ["", " sc1"][OPT.get("k2_stf", 0)]
    CB = NSLOT * 8192
    HSZ = 4 * 4160
    CH = HSZ + 4608
    XCH = (CB + 2 * CH + 16383) // 16384 * 16384
    e(lines(f"""
    s_cmp_ge_u32 s2, 256
    s_cbranch_scc1 {name}_end
    s_load_dwordx4 s[4:7], s[0:1], 64
    s_load_dwordx4 s[8:11], s[0:1], 32
    s_load_dwordx2 s[28:29], s[0:1], 104
    s_load_dwordx2 s[62:63], s[0:1], 0
    s_load_dwordx2 s[64:65], s[0:1], 80
    v_lshrrev_b32 v1, 6, v0
    v_readfirstlane_b32 s24, v1
    v_and_b32 v1, 63, v0
    s_and_b32 s30, s2, 7
    s_lshr_b32 s31, s2, 3
    s_cmp_ge_u32 s2, 224
    s_cbranch_scc1 {name}_pf
    s_cmp_ge_u32 s24, 4
    s_cbranch_scc1 {name}_conv
    s_setprio {OPT.get("k2_prio", 1)}
    s_and_b32 s32, s30, 1
    s_mul_i32 s32, s32, 28
    s_add_u32 s32, s32, s31
    s_lshr_b32 s25, s32, 3
    s_and_b32 s32, s32, 7
    s_lshr_b32 s26, s30, 1
    s_lshl_b32 s26, s26, 3
    s_add_u32 s26, s26, s32
    s_lshl_b32 s27, s25, 2
    s_add_u32 s27, s27, s24
    v_lshrrev_b32 v11, 3, v1
    v_and_b32 v12, 7, v1
    v_lshrrev_b32 v13, 4, v1
    v_lshlrev_b32 v14, 12, v11
    v_xor_b32 v15, v12, v13
    v_lshl_add_u32 v2, v15, 4, v14
    v_xor_b32 v15, 4, v15
    v_lshl_add_u32 v3, v15, 4, v14
    v_add_u32 v3, 0x8000, v3
    v_lshlrev_b32 v4, 4, v1
    s_lshl_b32 s34, s26, 2
    s_add_u32 s34, s34, s24
    s_lshl_b32 s34, s34, 16
    s_lshl_b32 s35, s27, 17
    s_add_u32 s35, s35, {Z2F}
    s_lshl_b32 s36, s24, 11
    s_waitcnt lgkmcnt(0)
    """))
    e(stamp(0))
    e(srd(12, 4, S * S * 2)); e(srd(20, 28, WS_SIZE))
    ZB = 96
    def zreg(k): return ZB + 4 * (k % (ZD + 1))
    def zload(k):
        r = []
        if k % 4 == 0: r.append(f"s_add_u32 s33, s35, {k*1024}")
        r.append(('v', f"buffer_load_dwordx4 {vr(zreg(k),4)}, v4, s[20:23], s33 offen offset:{(k%4)*1024}", ("z", k)))
        return r
    def wdma(st, i2):
        return [f"s_add_u32 m0, s36, {(st % NSLOT)*8192 + i2*1024}"] + ([f"s_add_u32 s38, s34, {st*128}"] if i2 == 0 else []) + \
               [('v', f"buffer_load_dwordx4 v{2+i2}, s[12:15], s38 offen lds", ("w", st))]
    WD = OPT.get("k2_wd", 3)
    assert WD <= NSLOT - 2
    for st in range(WD):
        e(wdma(st, 0)); e(wdma(st, 1))
        for k in range(4 * st, min(4 * st + 4, ZD)): e(zload(k))
    for k in range(4 * WD, ZD): e(zload(k))
    e(srd(16, 6, S * 2))
    e(lines(f"""
    v_and_b32 v11, 31, v1
    v_lshrrev_b32 v12, 5, v1
    v_bfe_u32 v13, v1, 1, 3
    v_xor_b32 v13, v13, v12
    v_lshlrev_b32 v14, 7, v11
    v_lshl_add_u32 v5, v13, 4, v14
    v_xor_b32 v6, 32, v5
    v_xor_b32 v7, 64, v5
    v_xor_b32 v8, 96, v5
    v_lshlrev_b32 v11, 1, v11
    s_lshl_b32 s40, s27, 6
    s_lshl_b32 s37, s26, 1
    s_add_u32 s40, s40, s37
    s_lshl_b32 s40, s40, 11
    s_lshl_b32 s41, s26, 7
    s_mul_i32 s42, s26, 112
    s_lshl_b32 s37, s27, 1
    s_add_u32 s42, s42, s37
    s_lshl_b32 s42, s42, 10
    s_add_u32 s42, s42, {PF}
    s_add_u32 s43, s42, {56*1024}
    """))
    WF = 48
    Z1R = 72
    BIA = 88
    def wreads(k):
        st, ks = k >> 2, k & 3
        return [('l', f"ds_read_b128 {vr(WF+8*(k%3)+4*ts,4)}, v{5+ks} offset:{(st % NSLOT)*8192 + ts*4096}", ("w", k)) for ts in range(2)]
    z1l = [('v', f"buffer_load_dwordx4 {vr(Z1R+4*i,4)}, v4, s[20:23], s40 offen offset:{i*1024}", "z1") for i in range(4)]
    z1l += [('v', f"buffer_load_ushort v{BIA+2*ts}, v11, s[16:19], s41 offen offset:{ts*64}", "z1") for ts in range(2)]
    Z1AT = OPT.get("k2_z1at", 128 - ZD)
    e([('wv', ("w", 0)), "s_barrier"]); e(stamp(1))
    e(wreads(0)); e(wreads(1))
    NOM = OPT.get("x2_nomfma")
    for k in range(128):
        e(('wvl', ("z", k), ("w", k)))
        mm = [f"v_mfma_f32_32x32x16_bf16 {vr(16+16*ts,16)}, {vr(zreg(k),4)}, {vr(WF+8*(k%3)+4*ts,4)}, {'0' if k == 0 else vr(16+16*ts,16)}" for ts in range(2)]
        if not NOM or k == 0: e(mm[0])
        if k + 2 < 128:
            if (k + 2) % 4 == 0: e([('wv', ("w", (k + 2) >> 2)), "s_barrier"])
            e(wreads(k + 2))
        if not NOM or k == 0: e(mm[1])
        st = (k >> 2) + WD
        if st < 32 and (k & 3) < 2: e(wdma(st, k & 3))
        if k + ZD < 128: e(zload(k + ZD))
        if Z1AT <= k < Z1AT + 6: e(z1l[k - Z1AT])
    e(stamp(2))
    e("s_waitcnt vmcnt(0)")
    e([f"v_lshlrev_b32 v{BIA}, 16, v{BIA}", f"v_lshlrev_b32 v{BIA+2}, 16, v{BIA+2}"])
    T = 96
    for q in range(16):
        e([f"v_lshlrev_b32 v{T+2*q}, 16, v{Z1R+q}", f"v_and_b32 v{T+2*q+1}, 0xffff0000, v{Z1R+q}"])
    for ts in range(2):
        for q in range(8):
            e(f"v_pk_add_f32 {vr(16+16*ts+2*q,2)}, {vr(16+16*ts+2*q,2)}, {vr(BIA+2*ts,2)} op_sel_hi:[1,0]")
        for q in range(8):
            e(f"v_pk_mul_f32 {vr(T+16*ts+2*q,2)}, {vr(T+16*ts+2*q,2)}, {vr(16+16*ts+2*q,2)}")
        P = 48 + 8 * ts
        for q in range(8):
            e(f"v_cvt_pk_bf16_f32 v{P+q}, v{T+16*ts+2*q}, v{T+16*ts+2*q+1}")
        for k2 in range(2):
            e(f"v_permlane32_swap_b32 v{P+4*k2}, v{P+4*k2+2}")
            e(f"v_permlane32_swap_b32 v{P+4*k2+1}, v{P+4*k2+3}")
        for k2 in range(2):
            e(f"buffer_store_dwordx4 {vr(P+4*k2,4)}, v4, s[20:23], s{42+ts} offen offset:{k2*1024}{PST}")
    for i in range(3, 7): e(stamp(i))
    e(stamp_out(1))
    e("s_endpgm")
    e = Em(a)
    e(lines(f"""
    {name}_conv:
    s_sub_u32 s38, s24, 4
    s_lshr_b32 s39, s38, 1
    s_and_b32 s27, s38, 1
    s_lshl_b32 s40, s2, 1
    s_add_u32 s40, s40, s39
    s_mul_i32 s41, s39, {CH}
    s_add_u32 s41, s41, {CB}
    s_add_u32 s42, s41, {HSZ}
    s_lshl_b32 s33, s40, 12
    s_waitcnt lgkmcnt(0)
    s_add_u32 s8, s8, s33
    s_addc_u32 s9, s9, 0
    """))
    for i in range(8): e(stamp(i))
    e(srd(12, 8, 4096)); e(srd(16, 10, D * 2)); e(srd(20, 28, WS_SIZE))
    e(lines(f"""
    v_lshlrev_b32 v2, 4, v1
    s_lshl_b32 s34, s27, 11
    v_add_u32 v3, s34, v2
    v_and_b32 v4, 1, v1
    v_lshlrev_b32 v4, 4, v4
    v_add_u32 v5, {(-32) & 0xffffffff}, v4
    v_add_u32 v6, {(-16) & 0xffffffff}, v4
    v_lshlrev_b32 v8, 3, v1
    v_add_u32 v8, s42, v8
    v_mov_b32 v10, 0
    v_mov_b32 v11, 0
    ds_write_b64 v8, v[10:11] offset:4096
    v_and_b32 v9, 15, v1
    v_lshrrev_b32 v10, 4, v1
    v_add_u32 v11, 1, v9
    v_and_b32 v12, 3, v11
    v_mul_u32_u24 v12, 4160, v12
    v_and_b32 v11, 0x1c, v11
    v_lshl_add_u32 v12, v11, 1, v12
    v_lshl_add_u32 v12, v10, 4, v12
    s_lshl_b32 s35, s27, 8
    s_add_u32 s36, s41, s35
    v_add_u32 v50, s36, v12
    v_lshlrev_b32 v12, 5, v9
    v_lshlrev_b32 v13, 4, v10
    v_sub_u32 v13, v13, v12
    s_add_u32 s36, s42, s35
    s_add_u32 s36, s36, 480
    v_add_u32 v51, s36, v13
    s_add_u32 s36, s41, 32
    v_add_u32 v52, s36, v3
    v_add_u32 v53, s41, v4
    s_lshl_b32 s35, s38, 12
    s_add_u32 s35, s35, {XCH}
    v_add_u32 v54, s35, v2
    s_xor_b32 s35, s35, 4096
    v_add_u32 v55, s35, v2
    v_lshlrev_b32 v56, 5, v9
    v_lshl_add_u32 v56, v10, 3, v56
    s_sub_u32 s36, s42, s34
    s_add_u32 s36, s36, {4088 - 3*512}
    v_sub_u32 v57, s36, v56
    s_lshl_b32 s43, s40, 12
    s_add_u32 s43, s43, s34
    s_add_u32 s43, s43, {YT}
    """))
    HA = 64
    hl = []
    for it in range(2):
        hl.append(('v', f"buffer_load_dwordx4 {vr(HA+8*it,4)}, v3, s[12:15], 0 offen offset:{it*1024}", "h"))
        hl.append(('v', f"buffer_load_dwordx2 {vr(HA+8*it+4,2)}, v3, s[12:15], 0 offen offset:{it*1024+16}", "h"))
    hl.append(('v', f"buffer_load_dwordx4 {vr(HA+16,4)}, v5, s[12:15], 0 offen", "h"))
    hl.append(('v', f"buffer_load_dwordx2 {vr(HA+20,2)}, v6, s[12:15], 0 offen", "h"))
    hl += lines(f"s_mul_i32 s35, s40, {URS}\ns_add_u32 s35, s35, {UR}\ns_add_u32 s35, s35, s34\ns_add_u32 m0, s42, s34")
    hl.append(('v', f"buffer_load_dwordx4 v2, s[20:23], s35 offen lds", "h"))
    hl.append(('v', f"buffer_load_dwordx4 v2, s[20:23], s35 offen offset:1024 lds", "h"))
    hl += lines(f"s_lshl_b32 s35, s40, 1\nv_mov_b32 v7, s35")
    hl.append(('v', f"buffer_load_ushort v60, v7, s[16:19], 0 offen", "h"))
    nb = [0]
    def bar(n=1):
        for _ in range(n):
            e("s_barrier"); nb[0] += 1
    HAT = OPT.get("k2_hat", 4)
    bar(HAT)
    e(hl[:4]); bar(); e(hl[4:]); bar()
    bar(OPT.get("k2_hwait", 3))
    e(('wv', "h"))
    for it in range(3):
        A = HA + 8 * it
        O = 96 + 12 * it
        for q in range(4):
            e(f"v_alignbit_b32 v{O+q}, v{A+q+1}, v{A+q}, 16")
            e(f"v_mov_b32 v{O+4+q}, v{A+q+1}")
            e(f"v_alignbit_b32 v{O+8+q}, v{A+q+2}, v{A+q+1}, 16")
        ad = 52 if it < 2 else 53
        off = it * 1024 if it < 2 else 0
        e(f"ds_write_b128 v{ad}, {vr(A,4)} offset:{off}")
        for c in range(1, 4):
            e(f"ds_write_b128 v{ad}, {vr(O+4*(c-1),4)} offset:{off + c*4160}")
        if it == 2: e("s_waitcnt lgkmcnt(0)")
        if it != 1: bar()
    e(stamp(1))
    FBc = [64, 128]
    def loads(r):
        b = FBc[r & 1]
        lst = []
        for c in range(8):
            lst.append(f"ds_read_b128 {vr(b+32+4*c,4)}, v51 offset:{512*(7-c) + 64*r}")
            lst.append(f"ds_read_b64 {vr(b+4*c,2)}, v50 offset:{64*(8*c+r)}")
            lst.append(f"ds_read_b64 {vr(b+4*c+2,2)}, v50 offset:{64*(8*c+r)+8}")
        return lst
    for l in loads(0)[:12]: e(l)
    e("s_waitcnt lgkmcnt(0)")
    for l in loads(0)[12:]: e(l)
    bar()
    e("s_waitcnt lgkmcnt(0)")
    left = 31 - nb[0]
    PER = -(-144 // (left + 1))
    cnt = 0
    seen = set()
    for r in range(4):
        b = FBc[r & 1]
        nxt = loads(r + 1) if r < 3 else []
        mm = [(c, q) for c in range(8) for q in range(8 - c)]
        for i, (c, q) in enumerate(mm):
            first = (c + q) not in seen; seen.add(c + q)
            if not OPT.get("x2_noconv") or first:
                e(f"v_mfma_f32_16x16x32_bf16 {vr(16+4*(c+q),4)}, {vr(b+4*c,4)}, {vr(b+32+4*q,4)}, {'0' if first else vr(16+4*(c+q),4)}")
                if i < len(nxt): e(nxt[i])
            cnt += 1
            if i in (11, 23, 35): e("s_waitcnt lgkmcnt(0)")
            if cnt % PER == 0 and cnt < 144: bar()
    e(stamp(2))
    for t in range(4):
        e(f"ds_read_b64 {vr(80+2*t,2)}, v57 offset:{(3-t)*512}")
    e(f"v_lshlrev_b32 v60, 16, v60")
    nb_save = nb[0]
    e([f"s_cmp_eq_u32 s27, 0", f"s_cbranch_scc0 {name}_h1"])
    for hf in range(2):
        nb[0] = nb_save
        keep, send = (16, 32) if hf == 0 else (32, 16)
        if hf == 1: e(f"{name}_h1:"); e("s_nop 7")
        for t in range(4):
            e(f"ds_write_b128 v54, {vr(send+4*t,4)} offset:{t*1024}")
        e("s_waitcnt lgkmcnt(0)")
        assert nb[0] <= 31
        bar(32 - nb[0])
        for t in range(4):
            e(f"ds_read_b128 {vr(64+4*t,4)}, v55 offset:{t*1024}")
        if OPT["k2_k3pf"]:
            e(srd(52, 64, FH * D * 2)); e(srd(56, 62, S * D * 2))
            e(lines(f"""
            v_lshlrev_b32 v58, 7, v1
            s_lshl_b32 s33, s31, 2
            s_add_u32 s33, s33, s38
            s_lshl_b32 s45, s33, 13
            s_mul_i32 s46, s30, {256*896}
            s_lshl_b32 s33, s33, 11
            s_add_u32 s46, s46, s33
            v_and_b32 v59, 0x780, v58
            buffer_load_dword v61, v58, s[52:55], s45 offen
            buffer_load_dword v62, v59, s[56:59], s46 offen
            """))
        for t in range(4):
            Y = keep + 4 * t
            U = 96 + 4 * t
            e(lines(f"""
            v_and_b32 v{U}, 0xffff0000, v{81+2*t}
            v_lshlrev_b32 v{U+1}, 16, v{81+2*t}
            v_and_b32 v{U+2}, 0xffff0000, v{80+2*t}
            v_lshlrev_b32 v{U+3}, 16, v{80+2*t}
            v_fmac_f32 v{Y}, v{U}, v60
            v_fmac_f32 v{Y+1}, v{U+1}, v60
            v_fmac_f32 v{Y+2}, v{U+2}, v60
            v_fmac_f32 v{Y+3}, v{U+3}, v60
            """))
        e("s_waitcnt lgkmcnt(0)")
        for t in range(4):
            Y = keep + 4 * t
            e(lines(f"""
            v_add_f32 v{Y}, v{Y}, v{64+4*t}
            v_add_f32 v{Y+1}, v{Y+1}, v{65+4*t}
            v_add_f32 v{Y+2}, v{Y+2}, v{66+4*t}
            v_add_f32 v{Y+3}, v{Y+3}, v{67+4*t}
            v_cvt_pk_bf16_f32 v{112+2*t}, v{Y}, v{Y+1}
            v_cvt_pk_bf16_f32 v{113+2*t}, v{Y+2}, v{Y+3}
            buffer_store_dwordx2 {vr(112+2*t,2)}, v56, s[20:23], s43 offen offset:{t*512} sc1
            """))
        e(stamp_out(1))
        e("s_endpgm")
    e = Em(a)
    NL = OPT.get("k1_nl", 3) if OPT["k1_wsp"] else -1
    first_sg = ((1 << NL) // 4) if NL >= 2 else 0
    nsg = 8 - first_sg
    e(lines(f"""
    {name}_pf:
    s_sub_u32 s32, s31, 28
    s_lshl_b32 s32, s32, 3
    s_add_u32 s32, s32, s24
    v_lshlrev_b32 v2, 7, v1
    v_lshrrev_b32 v3, 2, v1
    v_and_b32 v4, 3, v1
    v_lshlrev_b32 v4, 7, v4
    v_lshl_add_u32 v3, v3, 12, v4
    s_lshl_b32 s33, s32, 3
    s_add_u32 s33, s33, s30
    s_lshl_b32 s33, s33, 13
    s_and_b32 s34, s32, 15
    s_lshl_b32 s34, s34, 16
    s_lshl_b32 s35, s30, 20
    s_add_u32 s34, s34, s35
    s_lshr_b32 s35, s32, 4
    s_lshl_b32 s35, s35, 9
    s_add_u32 s34, s34, s35
    s_add_u32 s34, s34, {first_sg*512}
    s_waitcnt lgkmcnt(0)
    """))
    for i in range(8): e(stamp(i))
    e(srd(12, 8, D * S * 2)); e(srd(16, 4, S * S * 2)); e(srd(20, 28, WS_SIZE))
    if OPT.get("code_pf", 1): e(code_touch("k2", 32, 20, 21, start="k2_kernel", sp=66))
    if OPT["k2_zpf"]:
        order = OPT.get("k2_pforder", 0)
        hh_ = ["buffer_load_dword v8, v2, s[12:15], s33 offen"]
        ww_ = []
        for i in range(nsg // 2):
            ww_.append([f"buffer_load_dword v{9+i}, v3, s[16:19], s34 offen", "s_add_u32 s34, s34, 1024"])
        e(hh_ + ww_ if order == 0 else ww_[:1] + hh_ + ww_[1:])
    e(stamp_out(1))
    e(f"{name}_end:")
    e("s_endpgm")
    return a, XCH + 4 * 4096, max(ZB + 4 * (ZD + 1), 192)

def gen_k3(name):
    a = Asm(); e = Em(a)
    WSZ = 28672
    YB = 4 * WSZ
    e(lines(f"""
    s_cmp_ge_u32 s2, 224
    s_cbranch_scc1 {name}_end
    s_load_dwordx2 s[4:5], s[0:1], 0
    s_load_dwordx4 s[8:11], s[0:1], 80
    s_load_dwordx2 s[28:29], s[0:1], 104
    v_lshrrev_b32 v1, 6, v0
    v_readfirstlane_b32 s24, v1
    v_and_b32 v1, 63, v0
    s_and_b32 s30, s2, 7
    s_lshr_b32 s31, s2, 3
    s_mul_i32 s32, s31, 37
    s_lshr_b32 s32, s32, 8
    s_mul_i32 s33, s32, 7
    s_sub_u32 s26, s31, s33
    s_lshl_b32 s25, s30, 2
    s_add_u32 s25, s25, s32
    v_lshrrev_b32 v11, 3, v1
    v_and_b32 v12, 7, v1
    v_bfe_u32 v13, v1, 4, 1
    v_mul_u32_u24 v14, 896, v11
    v_lshlrev_b32 v13, 2, v13
    v_xor_b32 v15, v12, v13
    v_lshl_add_u32 v2, v15, 4, v14
    v_lshlrev_b32 v4, 4, v1
    s_lshr_b32 s38, s24, 1
    s_and_b32 s39, s24, 1
    s_mul_i32 s34, s24, {224*896}
    s_lshl_b32 s35, s26, 7
    s_add_u32 s34, s34, s35
    s_lshl_b32 s44, s25, 1
    s_add_u32 s44, s44, s39
    s_xor_b32 s49, s44, 1
    s_mul_i32 s36, s24, {14*1024}
    s_add_u32 s36, s36, {PF}
    s_mul_i32 s35, s44, {56*1024}
    s_add_u32 s35, s35, s36
    s_mul_i32 s49, s49, {56*1024}
    s_add_u32 s36, s49, s36
    s_mul_i32 s37, s24, {WSZ}
    s_waitcnt lgkmcnt(0)
    """))
    e(stamp(0))
    e(srd(12, 8, FH * D * 2)); e(srd(20, 28, WS_SIZE))
    PB = 80
    def issue(i):
        r = []
        for i2 in range(2):
            r += [f"s_add_u32 s33, s34, {(16*i+8*i2)*896}", f"s_add_u32 m0, s37, {i*2048 + i2*1024}",
                  ('v', f"buffer_load_dwordx4 v2, s[12:15], s33 offen lds", i)]
        for ts in range(2):
            r += [f"s_add_u32 s33, s{35+ts}, {i*1024}",
                  ('v', f"buffer_load_dwordx4 {vr(PB+8*i+4*ts,4)}, v4, s[20:23], s33 offen", i)]
        return r
    AHEAD = OPT.get("k3_ahead", 4)
    for i in range(AHEAD): e(issue(i))
    e(srd(16, 10, S * D * 2)); e(srd(40, 4, S * D * 2))
    e(lines(TR_ADDR + f"""
    v_add_u32 v9, s37, v14
    s_lshl_b32 s33, s38, 6
    v_xor_b32 v9, s33, v9
    v_xor_b32 v10, 64, v9
    """))
    for r in range(16, 80): e(f"v_mov_b32 v{r}, 0")
    WF = 192
    def rd(i):
        b = WF + 8 * (i & 1)
        return [('l', f"ds_read_b64_tr_b16 {vr(b+4*sub+2*h,2)}, v{9+sub} offset:{i*2048 + h*512}", ("w", i)) for sub in range(2) for h in range(2)]
    XR, ST, YR = 208, 216, 220
    ex = lines(f"""
    v_and_b32 v11, 31, v1
    v_mul_u32_u24 v12, 896, v11
    v_lshrrev_b32 v13, 5, v1
    v_lshl_add_u32 v3, v13, 4, v12
    s_mul_i32 s45, s44, {32*896}
    s_lshl_b32 s46, s26, 1
    s_add_u32 s46, s46, s38
    s_lshl_b32 s47, s46, 6
    s_add_u32 s45, s45, s47
    """) + [('v', f"buffer_load_dwordx4 {vr(XR,4)}, v3, s[40:43], s45 offen", "ex"),
            ('v', f"buffer_load_dwordx4 {vr(XR+4,4)}, v3, s[40:43], s45 offen offset:32", "ex")] + lines(f"""
    v_lshlrev_b32 v12, 3, v11
    s_lshl_b32 s47, s44, 8
    s_add_u32 s47, s47, {XST}
    """) + [('v', f"buffer_load_dwordx2 {vr(ST,2)}, v12, s[20:23], s47 offen", "ex")] + lines(f"""
    v_lshrrev_b32 v12, 2, v1
    v_lshlrev_b32 v12, 12, v12
    v_and_b32 v13, 3, v1
    v_lshl_add_u32 v12, v13, 4, v12
    s_lshl_b32 s47, s46, 17
    s_lshl_b32 s48, s44, 6
    s_add_u32 s47, s47, s48
    s_add_u32 s47, s47, {YT}
    s_lshl_b32 s48, s24, 11
    s_add_u32 s48, s48, {YB}
    s_mov_b32 m0, s48
    """) + [('v', "buffer_load_dwordx4 v12, s[20:23], s47 offen lds", "ex"),
            "s_add_u32 s47, s47, 0x10000", "s_add_u32 m0, s48, 1024",
            ('v', "buffer_load_dwordx4 v12, s[20:23], s47 offen lds", "ex")]
    e(('wv', 0)); e(stamp(1))
    e(rd(0))
    for i in range(14):
        if i + AHEAD < 14: e(issue(i + AHEAD))
        if i + AHEAD == 14: e(ex)
        if i + 1 < 14:
            e(('wv', i + 1)); e(rd(i + 1))
        e(('wl', ("w", i)))
        b = WF + 8 * (i & 1)
        for sub in range(2):
            for ts in range(2):
                acc = 16 + 16 * (2 * sub + ts)
                e(f"v_mfma_f32_32x32x16_bf16 {vr(acc,16)}, {vr(b+4*sub,4)}, {vr(PB+8*i+4*ts,4)}, {vr(acc,16)}")
    e(stamp(2))
    e(lines(f"""
    v_add_u32 v5, s37, v4
    s_xor_b32 s33, s24, 1
    s_mul_i32 s33, s33, {WSZ}
    v_add_u32 v6, s33, v4
    s_xor_b32 s33, s24, 2
    s_mul_i32 s33, s33, {WSZ}
    v_add_u32 v7, s33, v4
    s_xor_b32 s33, s24, 3
    s_mul_i32 s33, s33, {WSZ}
    v_add_u32 v8, s33, v4
    v_lshrrev_b32 v12, 5, v1
    v_bfe_u32 v13, v1, 2, 2
    v_lshl_add_u32 v14, v12, 2, v13
    v_lshlrev_b32 v14, 6, v14
    v_bfe_u32 v15, v1, 4, 1
    v_lshl_add_u32 v14, v15, 5, v14
    v_and_b32 v15, 3, v1
    v_lshl_add_u32 v14, v15, 3, v14
    v_add_u32 v14, s48, v14
    """))
    for j in range(1, 4):
        for g in range(4):
            e(('l', f"ds_write_b128 v5, {vr(16+16*j+4*g,4)} offset:{(j-1)*4096+g*1024}", "rw"))
    e(('wv', "ex"))
    for g in range(4):
        e(('l', f"ds_read_b64_tr_b16 {vr(YR+2*g,2)}, v14 offset:{g*512}", "y"))
    for k2 in range(2):
        e(f"v_permlane32_swap_b32 v{XR+4*k2}, v{XR+4*k2+2}")
        e(f"v_permlane32_swap_b32 v{XR+4*k2+1}, v{XR+4*k2+3}")
    X, Y, T = 128, 144, 160
    for q in range(8):
        e([f"v_lshlrev_b32 v{X+2*q}, 16, v{XR+q}", f"v_and_b32 v{X+2*q+1}, 0xffff0000, v{XR+q}"])
    e([('wl', "y"), "s_barrier"])
    for j in range(1, 4):
        for g in range(4):
            e(('l', f"ds_read_b128 {vr(80+16*(j-1)+4*g,4)}, v{5+j} offset:{(j-1)*4096+g*1024}", ("rr", j)))
    e(lines(f"v_mov_b32 v218, v{ST+1}\nv_mov_b32 v176, {f32(-math.log2(math.e))}\nv_mov_b32 v178, 1.0"))
    for q in range(8):
        e([f"v_lshlrev_b32 v{Y+2*q}, 16, v{YR+q}", f"v_and_b32 v{Y+2*q+1}, 0xffff0000, v{YR+q}"])
    for q in range(8): e(f"v_pk_add_f32 {vr(T+2*q,2)}, {vr(X+2*q,2)}, {vr(ST,2)} op_sel_hi:[1,0] neg_lo:[0,1] neg_hi:[0,1]")
    for q in range(8): e(f"v_pk_mul_f32 {vr(T+2*q,2)}, {vr(T+2*q,2)}, {vr(218,2)} op_sel_hi:[1,0]")
    for q in range(8): e(f"v_pk_mul_f32 {vr(Y+2*q,2)}, {vr(T+2*q,2)}, {vr(Y+2*q,2)}")
    O = 16
    for j in range(1, 4):
        e(('wl', ("rr", j)))
        for q in range(8):
            e(f"v_pk_add_f32 {vr(O+2*q,2)}, {vr(O+2*q,2)}, {vr(80+16*(j-1)+2*q,2)}")
    for q in range(8): e(f"v_pk_mul_f32 {vr(T+2*q,2)}, {vr(O+2*q,2)}, {vr(176,2)} op_sel_hi:[1,0]")
    for q in range(16): e(f"v_exp_f32 v{T+q}, v{T+q}")
    for q in range(8): e(f"v_pk_mul_f32 {vr(O+2*q,2)}, {vr(O+2*q,2)}, {vr(Y+2*q,2)}")
    for q in range(8): e(f"v_pk_add_f32 {vr(T+2*q,2)}, {vr(T+2*q,2)}, {vr(178,2)} op_sel_hi:[1,0]")
    for q in range(16): e(f"v_rcp_f32 v{T+q}, v{T+q}")
    for q in range(8): e(f"v_pk_fma_f32 {vr(T+2*q,2)}, {vr(T+2*q,2)}, {vr(O+2*q,2)}, {vr(X+2*q,2)}")
    P = 96
    for q in range(8): e(f"v_cvt_pk_bf16_f32 v{P+q}, v{T+2*q}, v{T+2*q+1}")
    for k2 in range(2):
        e(f"v_permlane32_swap_b32 v{P+4*k2}, v{P+4*k2+2}")
        e(f"v_permlane32_swap_b32 v{P+4*k2+1}, v{P+4*k2+3}")
    for k2 in range(2):
        e(f"buffer_store_dwordx4 {vr(P+4*k2,4)}, v3, s[16:19], s45 offen offset:{k2*32}")
    for i in range(3, 7): e(stamp(i))
    e(stamp_out(2))
    if DIAG and OPT.get("dbgout"):
        WGD = OPT["dbgout"]
        e(lines(f"""
        s_cmp_lg_u32 s2, {WGD}
        s_cbranch_scc1 {name}_end
        s_cmp_lg_u32 s24, 0
        s_cbranch_scc1 {name}_end
        s_load_dwordx2 s[8:9], s[0:1], 96
        s_waitcnt vmcnt(0)
        v_mov_b32 v1, 0
        """))
        sel = [(0, 0), (0, 1), (0, 2), (0, 3), (0, 4), (0, 5), (0, 7), (1, 0), (1, 1), (1, 2), (1, 7), (2, 0), (2, 1), (2, 2), (2, 7)]
        for i, (kk, st) in enumerate(sel):
            e([f"s_mov_b32 s33, {TSB + kk*0x20000 + WGD*512 + 4*st}", f"buffer_load_dword v{8+i}, v1, s[20:23], s33 offen sc0 sc1"])
        e("s_waitcnt vmcnt(0) lgkmcnt(0)")
        for i in range(len(sel)):
            e([f"v_sub_u32 v{30+i}, v{8+i}, v8", f"global_store_dword v1, v{30+i}, s[8:9] offset:{4*i}"])
    e(f"{name}_end:")
    e("s_endpgm")
    return a, YB + 4 * 2048

HEADER = open("recurrent_scan__ssm_conv_h3__mixer_gmlp__prompt.s.ref").read().split("; Override")[0]

def build(kernels, path):
    out = HEADER
    for (name, a, grid, block, lds, vg, acc) in kernels:
        out += f"; @launch kernel={name} grid=({grid},1,1) block=({block},1,1) lds={lds}\n"
    out += '.amdgcn_target "amdgcn-amd-amdhsa--gfx950"\n.text\n'
    for (name, a, grid, block, lds, vg, acc) in kernels:
        out += kernel_header(name) + a.text()
    out += 'code_end:\n.section .rodata,"a"\n'
    for (name, a, grid, block, lds, vg, acc) in kernels:
        out += kernel_desc(name, vg, accum=acc)
    open(path, "w").write(out)

if __name__ == "__main__":
    args = sys.argv[1:]
    if "--diag" in args:
        DIAG = True
        args.remove("--diag")
    for x in list(args):
        if "=" in x:
            k, v = x.split("=")
            OPT[k] = float(v) if "." in v else int(v)
            args.remove(x)
    k2, lds2, vg2 = gen_k2("k2_kernel")
    k3, lds3 = gen_k3("k3_kernel")
    ks = [("k1_kernel", gen_k1("k1_kernel"), 256, 256, 163840, 368, 256),
          ("k2_kernel", k2, 256, 512, lds2, max(vg2, 192), None),
          ("k3_kernel", k3, 224, 256, lds3, 228, None)]
    build(ks, args[0] if args else "out.s")
```

```python
import sys, struct, math
from asmlib import *

S, D, F, FH = 2048, 448, 1792, 896
Z1F = 0x0000000
Z2F = 0x0400000
PF  = 0x0800000
UR  = 0x1000000
URS = 4096 + 128
YT  = 0x1200000
STATS = 0x1400000
FLG = 0x1480000
YFL = 0x1490000
XST = 0x1500000
TSB = 0x1510000
WS_SIZE = 0x1580000
DIAG = False
OPT = dict(k1_nl=0, k1_nsg=4, k1_touch=0, k1_wsp=1, k2_zpf=1, k2_k3pf=0, ZD=12, NSLOT2=6, k1_wout=1, k1_stf=1, k1_rot=1, k3_pf=1)

def f32(x):
    return "0x%08x" % struct.unpack("<I", struct.pack("<f", x))[0]

class Em:
    def __init__(self, a):
        self.a = a
        self.v = []
        self.l = []
    def _cnt(self, lst, tag, mx):
        tags = tag if isinstance(tag, (list, set)) else [tag]
        idx = [i for i, t in enumerate(lst) if t in tags]
        if not idx: return None
        n = len(lst) - 1 - max(idx)
        return min(n, mx)
    def __call__(self, it):
        if isinstance(it, str):
            self.a(it)
        elif isinstance(it, list):
            for x in it: self(x)
        elif it[0] == 'v':
            self.a(it[1]); self.v.append(it[2])
        elif it[0] == 'l':
            self.a(it[1]); self.l.append(it[2])
        elif it[0] == 'wv':
            n = self._cnt(self.v, it[1], 63)
            if n is not None: self.a(f"s_waitcnt vmcnt({n})")
        elif it[0] == 'wl':
            n = self._cnt(self.l, it[1], 15)
            if n is not None: self.a(f"s_waitcnt lgkmcnt({n})")
        elif it[0] == 'wvl':
            n = self._cnt(self.v, it[1], 63); m = self._cnt(self.l, it[2], 15)
            s = "s_waitcnt"
            if n is None and m is None: return
            if n is not None: s += f" vmcnt({n})"
            if m is not None: s += f" lgkmcnt({m})"
            self.a(s)
        else:
            raise ValueError(it)

def lines(s):
    return [l.strip() for l in s.strip("\n").split("\n") if l.strip()]

def merge(A, B, ratio):
    out = []
    bi = 0
    acc = 0.0
    for it in A:
        out.append(it)
        txt = it if isinstance(it, str) else ""
        if txt.startswith("v_mfma"):
            acc += ratio
            while acc >= 1.0 and bi < len(B):
                out.append(B[bi]); bi += 1; acc -= 1.0
    out += B[bi:]
    return out

def stamp(i):
    if not DIAG: return []
    r = [f"s_memrealtime s[{70+2*i}:{71+2*i}]"]
    if i == 0: r.append("s_memtime s[86:87]")
    if i == 7: r.append("s_memtime s[88:89]")
    return r
def stamp_out(kidx, srdreg=20, wavereg=24):
    if not DIAG: return []
    r = ["s_waitcnt vmcnt(0)"] + stamp(7)
    r += lines(f"""
    s_waitcnt lgkmcnt(0)
    s_mov_b64 exec, -1
    s_lshl_b32 s68, s2, 3
    s_add_u32 s68, s68, s{wavereg}
    s_lshl_b32 s68, s68, 6
    s_add_u32 s68, s68, {TSB + kidx*0x20000}
    v_mov_b32 v1, 0
    """)
    r.append("s_getreg_b32 s90, hwreg(HW_REG_XCC_ID)")
    for i in range(11):
        r.append(f"v_mov_b32 v2, s{70+2*i}")
        r.append(f"buffer_store_dword v2, v1, s[{srdreg}:{srdreg+3}], s68 offen offset:{4*i}")
    return r

def srd(dst, ptr, size):
    return lines(f"""
    s_mov_b32 s{dst}, s{ptr}
    s_and_b32 s{dst+1}, s{ptr+1}, 0xffff
    s_mov_b32 s{dst+2}, {size}
    s_mov_b32 s{dst+3}, 0x20000
    """)

def rbf16(dst, src):
    return [f"v_cvt_pk_bf16_f32 v{dst}, v{src}, v{src}", f"v_and_b32 v{dst}, 0xffff0000, v{dst}"]

def halfsum(v, t):
    return [f"v_mov_b32 v{t}, v{v}", f"v_permlane32_swap_b32 v{v}, v{t}", f"v_add_f32 v{v}, v{v}, v{t}"]

def ln_stats(vsum, vsq, n, vm, vsd, vr_):
    t = vsd
    r = [f"v_mul_f32 v{vsum}, {f32(1.0/n)}, v{vsum}",
         f"v_mul_f32 v{vsq}, {f32(1.0/n)}, v{vsq}",
         f"v_fma_f32 v{t}, -v{vsum}, v{vsum}, v{vsq}",
         f"v_max_f32 v{t}, 0, v{t}"]
    r += rbf16(vm, vsum) + rbf16(t, t)
    r += [f"v_add_f32 v{t}, {f32(1e-5)}, v{t}"] + rbf16(t, t)
    r += [f"v_sqrt_f32 v{t}, v{t}"] + rbf16(t, t)
    r += [f"v_rcp_f32 v{vr_}, v{t}"]
    return r

def code_touch(tagname, sidx, vo, vd, start="k1_kernel", sp=68):
    l = f"Lpc_{tagname}"
    return lines(f"""
    s_getpc_b64 s[{sp}:{sp+1}]
    {l}:
    s_sub_u32 s{sp}, s{sp}, {l}-k1_kernel
    s_subb_u32 s{sp+1}, s{sp+1}, 0
    s_lshl_b32 s99, s{sidx}, 13
    s_add_u32 s99, s99, {start}-k1_kernel
    v_lshl_add_u32 v{vo}, v1, 7, s99
    v_min_u32 v{vo}, code_end-k1_kernel-4, v{vo}
    """) + [('v', f"global_load_dword v{vd}, v{vo}, s[{sp}:{sp+1}]", "code")]

TR_ADDR = """
    v_lshrrev_b32 v12, 5, v1
    v_bfe_u32 v13, v1, 2, 2
    v_lshl_add_u32 v14, v12, 3, v13
    v_lshlrev_b32 v14, 7, v14
    v_bfe_u32 v15, v1, 4, 1
    v_lshl_add_u32 v14, v15, 5, v14
    v_and_b32 v15, 3, v1
    v_lshl_add_u32 v14, v15, 3, v14
    v_bfe_u32 v15, v1, 3, 1
    v_lshl_add_u32 v14, v15, 6, v14
"""

def gen_k1(name):
    a = Asm(); e = Em(a)
    STF = ["", " sc1", " nt", " sc0 sc1"][OPT.get("k1_stf", 0)]
    WR = 114688
    CSP = WR + 5 * 8192
    e(lines(f"""
    s_cmp_ge_u32 s2, 256
    s_cbranch_scc1 {name}_end
    s_cmp_ge_u32 s2, 224
    s_cbranch_scc1 {name}_side
    s_load_dwordx2 s[4:5], s[0:1], 0
    s_load_dwordx2 s[6:7], s[0:1], 56
    s_load_dwordx4 s[8:11], s[0:1], 96
    s_load_dwordx4 s[64:67], s[0:1], 8
    s_load_dwordx2 s[62:63], s[0:1], 24
    s_load_dwordx2 s[44:45], s[0:1], 64
    s_memrealtime s[60:61]
    v_lshrrev_b32 v1, 6, v0
    v_readfirstlane_b32 s24, v1
    v_and_b32 v1, 63, v0
    s_and_b32 s28, s2, 7
    s_lshr_b32 s29, s2, 3
    s_mul_i32 s30, s29, 37
    s_lshr_b32 s30, s30, 8
    s_mul_i32 s31, s30, 7
    s_sub_u32 s31, s29, s31
    s_lshr_b32 s25, s28, 1
    s_lshl_b32 s25, s25, 2
    s_add_u32 s25, s25, s30
    s_and_b32 s26, s28, 1
    s_mul_i32 s26, s26, 7
    s_add_u32 s26, s26, s31
    v_lshrrev_b32 v11, 3, v1
    v_and_b32 v12, 7, v1
    v_lshrrev_b32 v13, 4, v1
    v_mul_u32_u24 v14, 896, v11
    v_xor_b32 v15, v12, v13
    v_lshl_add_u32 v2, v15, 4, v14
    v_xor_b32 v15, 4, v15
    v_lshl_add_u32 v3, v15, 4, v14
    v_add_u32 v3, {8*896}, v3
    v_mul_u32_u24 v14, 3584, v11
    v_and_b32 v15, 1, v13
    v_lshlrev_b32 v15, 2, v15
    v_xor_b32 v15, v12, v15
    v_lshl_add_u32 v4, v15, 4, v14
    v_add_u32 v9, {8*3584}, v4
    s_lshl_b32 s34, s25, 2
    s_add_u32 s34, s34, s24
    s_mul_i32 s35, s34, {32*896}
    s_mul_i32 s36, s24, {16*3584}
    s_lshl_b32 s37, s26, 7
    s_add_u32 s38, s36, s37
    s_add_u32 s37, s38, {FH*2}
    s_lshl_b32 s39, s24, 12
    s_lshl_b32 s47, s24, 11
    s_lshl_b32 s49, s29, 2
    s_add_u32 s49, s49, s24
    s_lshl_b32 s27, s30, 1
    s_add_u32 s27, s27, s31
    """))
    if not OPT["k1_rot"]: e("s_mov_b32 s27, 0")
    e(lines("s_sub_u32 s33, s27, 7\ns_cmp_ge_u32 s27, 7\ns_cselect_b32 s27, s33, s27\ns_lshl_b32 s92, s27, 7"))
    for i in range(1, 7):
        e(lines(f"s_add_u32 s{92+i}, s{91+i}, 128\ns_cmp_eq_u32 s{92+i}, 896\ns_cselect_b32 s{92+i}, 0, s{92+i}"))
    e("s_waitcnt lgkmcnt(0)")
    e(stamp(0))
    e(srd(12, 4, S * D * 2)); e(srd(16, 6, D * F * 2))
    def dma_x(i):
        r = []
        for i4 in range(4):
            g = ([f"s_add_u32 s32, s35, s{92+i}"] if i4 == 0 else [f"s_add_u32 s32, s32, {16*896}"] if i4 == 2 else [])
            g = [f"s_add_u32 m0, s39, {i*16384 + i4*1024}"] + g + [('v', f"buffer_load_dwordx4 v{2 + (i4 & 1)}, s[12:15], s32 offen lds", ("x", i))]
            r.append(g)
        return r
    WLOC = [WR + i * 8192 for i in range(5)] + [0, 8192, WR, 16384, 24576, WR + 8192, 32768, 40960, WR + 16384]
    def dma_w(st):
        base = 37 if st < 7 else 38
        r = []
        for i2 in range(2):
            r.append([f"s_add_u32 m0, s47, {WLOC[st] + i2*1024}"] +
                     ([f"s_mul_i32 s43, s{92 + st % 7}, 1792", f"s_add_u32 s43, s43, s{base}"] if i2 == 0 else []) +
                     [('v', f"buffer_load_dwordx4 v{4 if i2 == 0 else 9}, s[16:19], s43 offen lds", ("w", st))])
        return r
    NI = OPT.get("k1_init", 3)
    lbl = name + "_nononce"
    e(lines(f"""
    s_or_b32 s33, s26, s24
    s_cmp_lg_u32 s33, 0
    s_cbranch_scc1 {lbl}
    s_or_b32 s61, s61, 0x80000000
    v_mov_b32 v12, s60
    v_mov_b32 v13, s61
    s_lshl_b32 s32, s25, 3
    v_mov_b32 v14, s32
    global_store_dwordx2 v14, v[12:13], s[8:9] sc0 sc1
    {lbl}:
    """))
    for i in range(NI):
        e(dma_x(i))
        if i < 5: e(dma_w(i))
    e(srd(20, 10, WS_SIZE))
    XA, WA = 5, 208
    e(lines(f"""
    v_and_b32 v11, 31, v1
    v_lshrrev_b32 v12, 5, v1
    v_bfe_u32 v13, v1, 1, 3
    v_xor_b32 v13, v13, v12
    v_lshlrev_b32 v14, 7, v11
    v_add_u32 v14, s39, v14
    v_lshl_add_u32 v5, v13, 4, v14
    s_lshl_b32 s32, s24, 5
    v_xor_b32 v5, s32, v5
    v_xor_b32 v6, 32, v5
    v_xor_b32 v7, 64, v5
    v_xor_b32 v8, 96, v5
    """ + TR_ADDR + f"""
    v_add_u32 v{WA}, s47, v14
    """))
    for t in range(1, 4): e(f"v_xor_b32 v{WA+t}, {t << 11}, v{WA}")
    for t in range(4): e(f"v_xor_b32 v{WA+4+t}, 64, v{WA+t}")
    for t in range(8): e(f"v_add_u32 v{WA+8+t}, {WR}, v{WA+t}")
    ACC = [16, 48]
    WFB = 80
    ONE = 104
    SUMA, GRAM, CSA = 108, 124, 140
    Z2P = 172
    TMP = 188
    GRN = 196
    BM, AC = 200, 204
    Z1P = 224
    NON = 240
    VK0, VK1, VSD, VMX = 242, 244, 246, 248
    SX = 252
    GR = 108
    for q in range(4): e(f"v_mov_b32 v{ONE+q}, 0x3f803f80")
    e(lines(f"""
    s_mov_b32 s48, 0x3f803f80
    s_mov_b32 s52, 0xaaaaaaaa
    s_mov_b32 s53, 0xaaaaaaaa
    s_mov_b32 s54, 0xcccccccc
    s_mov_b32 s55, 0xcccccccc
    s_mov_b32 s40, 0
    s_mov_b32 s41, -1
    """))
    def xa(k): return f"a[{4*(k%28)}:{4*(k%28)+3}]"
    def reads(k):
        st, t = k >> 2, k & 3
        r = []
        if st < 7:
            if k == 16: r += [f"v_add_u32 v{5+q}, 0x10000, v{5+q}" for q in range(4)]
            r.append(('l', f"ds_read_b128 {xa(k)}, v{5+t} offset:{(st & 3)*16384}", ("f", k)))
        loc = WLOC[st]; reg = 0
        if loc >= WR: loc -= WR; reg = 8
        for sub in range(2):
            for h in range(2):
                r.append(('l', f"ds_read_b64_tr_b16 {vr(WFB+8*(k%3)+4*sub+2*h,2)}, v{WA+reg+4*sub+t} offset:{loc + h*512}", ("f", k)))
        return r
    def mf(d, A_, B_, first):
        return f"v_mfma_f32_32x32x16_bf16 {vr(d,16)}, {A_}, {B_}, {'0' if first else vr(d,16)}"
    def compute(k):
        p = k // 28
        b = WFB + 8 * (k % 3)
        r = [mf(ACC[p] + 16 * sub, vr(b + 4 * sub, 4), xa(k), k % 28 == 0) for sub in range(2)]
        def m4(d, A_, B_, first):
            return f"v_mfma_f32_4x4x4_16b_bf16 {vr(d,4)}, {A_}, {B_}, {'0' if first else vr(d,4)}"
        if p == 0 and (k == 0 or not OPT.get("x_nodots")):
            x2 = [f"a[{4*k+2*q}:{4*k+2*q+1}]" for q in range(2)]
            r.append([m4(SUMA + 4 * q, vr(ONE, 2), x2[q], k == 0) for q in range(2)])
            r.append([m4(GRAM + 4 * q, x2[q], x2[q], k == 0) for q in range(2)])
        if k % 4 == 0 and (k % 28 == 0 or not OPT.get("x_nocs")):
            r.append([m4(CSA + 8 * sub + 4 * q, vr(ONE, 2), vr(b + 4 * sub + 2 * q, 2), k % 28 == 0) for sub in range(2) for q in range(2)])
        return r
    sched = {k: [] for k in range(28)}
    rest = []
    for st in range(NI, 7):
        rest += [(0, g) for g in dma_x(st)]
        if st < 5: rest += [(0, g) for g in dma_w(st)]
        elif NI <= st: rest += [(6, g) for g in dma_w(st)]
    for st in range(5, 14):
        if st < 7 and NI <= st: continue
        rest += [(6 + 4 * ((st - 5) // 3), g) for g in dma_w(st)]
    RATE = OPT.get("k1_rate", 2)
    kk = 0; c = 0
    for (k0, g) in rest:
        if kk < k0: kk = k0; c = 0
        sched[kk].append(g)
        c += 1
        if c >= RATE: kk += 1; c = 0
    def sync(st):
        return [('wv', [("x", st), ("w", st)]), "s_barrier"]
    KR, VRW, WRW, WT, KW, KA, KO = 116, 132, 156, 160, 168, 224, 228
    kwin = [168, 170, 236, 238]
    krl = list(range(116, 124)) + [252, 253, 254]
    touches = lines(f"""
    s_mul_i32 s46, s2, 293
    s_lshr_b32 s46, s46, 11
    s_mul_i32 s100, s46, 7
    s_sub_u32 s100, s2, s100
    s_lshl_b32 s68, s46, 2
    s_add_u32 s68, s68, s24
    s_mul_i32 s68, s68, {16*896}
    s_lshl_b32 s69, s100, 7
    s_add_u32 s68, s68, s69
    v_and_b32 v12, 31, v1
    v_lshrrev_b32 v13, 5, v1
    v_mul_u32_u24 v13, {8*896}, v13
    v_lshl_add_u32 v13, v12, 2, v13
    v_add_u32 v13, s68, v13
    v_add_u32 v14, {(-3*896) & 0xffffffff}, v13
    v_lshlrev_b32 v12, 4, v12
    s_lshl_b32 s69, s100, 9
    """) + srd(56, 62, D * 8)
    touches += [('v', f"buffer_load_dwordx4 {vr(WRW,4)}, v12, s[56:59], s69 offen", "kv")]
    touches += srd(56, 64, S * D * 2)
    for r in range(3):
        touches += [('v', f"buffer_load_dword v{krl[r]}, v14, s[56:59], 0 offen", "kv")] + ([f"v_add_u32 v14, 896, v14"] if r < 2 else [])
    touches += [f"v_add_u32 v14, {4*896}, v13"]
    for r in range(8):
        touches += [('v', f"buffer_load_dword v{krl[3+r]}, v{13 if r < 4 else 14}, s[56:59], 0 offen offset:{(r & 3)*896}", "kv")]
    touches += srd(56, 66, S * D * 2)
    for r in range(8):
        touches += [('v', f"buffer_load_dword v{VRW+r}, v{13 if r < 4 else 14}, s[56:59], 0 offen offset:{(r & 3)*896}", "kv")]
    NL = OPT.get("k1_nl", 5)
    if NL:
        touches += srd(56, 44, S * S * 2) + lines(f"""
        v_bfe_u32 v12, v1, {NL}, 1
        v_and_b32 v13, {(1 << NL) - 1}, v1
        v_lshlrev_b32 v13, 7, v13
        v_lshl_add_u32 v12, v12, 12, v13
        s_lshl_b32 s68, s28, 20
        s_lshl_b32 s69, s49, 13
        s_add_u32 s68, s68, s69
        """) + [('v', "buffer_load_dword v255, v12, s[56:59], s68 offen", "touch")]
    kvc = [('wv', "kv")]
    for c in range(2):
        kvc += [f"v_lshlrev_b32 v{WT+0+c}, 16, v{WRW+2*c}", f"v_and_b32 v{WT+2+c}, 0xffff0000, v{WRW+2*c}",
                f"v_lshlrev_b32 v{WT+4+c}, 16, v{WRW+2*c+1}", f"v_and_b32 v{WT+6+c}, 0xffff0000, v{WRW+2*c+1}"]
    def unp(dst, src): return [f"v_lshlrev_b32 v{dst}, 16, v{src}", f"v_and_b32 v{dst+1}, 0xffff0000, v{src}"]
    for r in range(3): kvc += unp(kwin[r], krl[r])
    for r in range(8):
        kvc += unp(kwin[(r + 3) % 4], krl[r + 3])
        acc = KA + 2 * (r & 1)
        for c in range(2): kvc.append(f"v_mul_f32 v{acc+c}, v{kwin[r % 4]+c}, v{WT+6+c}")
        for j in (2, 1, 0):
            for c in range(2): kvc.append(f"v_fmac_f32 v{acc+c}, v{kwin[(r+3-j) % 4]+c}, v{WT+2*j+c}")
        kvc += unp(kwin[r % 4], VRW + r)
        for c in range(2): kvc.append(f"v_mul_f32 v{acc+c}, v{acc+c}, v{kwin[r % 4]+c}")
        if r & 1:
            for c in range(2): kvc.append(f"v_cvt_pk_bf16_f32 v{KO+4*c+3-(r >> 1)}, v{KA+2+c}, v{KA+c}")
    KL = 65536
    kvc += lines(f"""
    s_lshl_b32 s68, s24, 1
    s_sub_u32 s68, 7, s68
    v_lshrrev_b32 v{KA}, 5, v1
    v_sub_u32 v{KA}, s68, v{KA}
    v_and_b32 v{KA+1}, 7, v1
    v_xor_b32 v{KA}, v{KA}, v{KA+1}
    v_and_b32 v{KA+1}, 31, v1
    v_lshlrev_b32 v{KA+1}, 8, v{KA+1}
    v_lshl_add_u32 v{KA}, v{KA}, 4, v{KA+1}
    v_add_u32 v{KA}, {KL}, v{KA}
    """)
    kvc += [('l', f"ds_write_b128 v{KA}, {vr(KO,4)}", "csw"), ('l', f"ds_write_b128 v{KA}, {vr(KO+4,4)} offset:128", "csw")]
    kvo = lines(f"""
    v_lshrrev_b32 v2, 4, v1
    v_and_b32 v3, 7, v1
    v_xor_b32 v2, v2, v3
    v_lshrrev_b32 v4, 3, v1
    v_lshlrev_b32 v9, 7, v4
    v_lshl_add_u32 v2, v2, 4, v9
    v_add_u32 v2, s47, v2
    v_add_u32 v2, {KL}, v2
    v_xor_b32 v9, 64, v2
    v_mul_u32_u24 v4, {URS}, v4
    v_lshl_add_u32 v4, v3, 4, v4
    s_lshl_b32 s68, s100, 2
    s_add_u32 s68, s68, s24
    s_mul_i32 s68, s68, {16*URS}
    s_lshl_b32 s69, s46, 7
    s_sub_u32 s68, s68, s69
    s_add_u32 s68, s68, {UR + 4096 - 128}
    s_add_u32 s69, s68, {8*URS}
    """)
    TAT = OPT.get("k1_tat", 20)
    e(sync(0)); e(stamp(1))
    e(reads(0)); e(reads(1))
    for k in range(28):
        cm = compute(k)
        e(('wl', ("f", k)))
        e(cm[:2])
        if k + 2 < 28:
            if (k + 2) % 4 == 0: e(sync((k + 2) >> 2))
            e(reads(k + 2))
        e(cm[2:3])
        e(sched[k][:1])
        e(cm[3:4])
        e(sched[k][1:])
        e(cm[4:])
        if k == min(23, TAT):
            e([f"s_lshl_b32 s33, s25, 3", "v_mov_b32 v11, s33", ('v', f"global_load_dwordx2 {vr(NON,2)}, v11, s[8:9] sc0 sc1", "nonce")])
        if k == TAT: e(touches)
    e(stamp(2))
    def cs_write(p):
        return lines(f"""
        s_lshl_b32 s32, s24, 2
        s_add_u32 s32, s32, {CSP + p*1024}
        v_lshl_add_u32 v11, v1, 4, s32
        v_add_f32 v12, v{CSA}, v{CSA+4}
        v_add_f32 v13, v{CSA+8}, v{CSA+12}
        v_permlane32_swap_b32 v12, v13
        v_add_f32 v12, v12, v13
        v_cvt_pk_bf16_f32 v13, v12, v12
        v_and_b32 v13, 0xffff0000, v13
        v_sub_f32 v12, v12, v13
        v_cvt_pk_bf16_f32 v12, v13, v12
        """) + [('l', f"ds_write_b32 v11, v12", "csw")]
    def cs_apply(p, mid):
        r = [f"v_and_b32 v11, 31, v1", f"v_lshlrev_b32 v11, 4, v11", f"v_add_u32 v11, {CSP + p*1024}, v11",
             ('l', f"ds_read_b128 {vr(AC,4)}, v11", "csr"), ('l', f"ds_read_b128 {vr(TMP,4)}, v11 offset:512", "csr")]
        r += mid
        r += [('wl', "csr"), mf(ACC[p], vr(AC, 4), vr(BM, 4), False), mf(ACC[p] + 16, vr(TMP, 4), vr(BM, 4), False)]
        return r
    c0 = -2.0 * math.sqrt(2.0 / math.pi) * math.log2(math.e)
    c1 = c0 * 0.044715
    def gelu_pack(p, dst):
        r = []
        G = 4
        for g0 in range(0, 16, G):
            prs = range(g0, g0 + G)
            z = {q: ACC[p] + 2*q for q in prs}
            t = {q: TMP + 2*(q - g0) for q in prs}
            for q in prs: r.append(f"v_pk_mul_f32 {vr(t[q],2)}, {vr(z[q],2)}, {vr(z[q],2)}")
            for q in prs: r.append(f"v_pk_fma_f32 {vr(t[q],2)}, {vr(t[q],2)}, {vr(VK1,2)}, {vr(VK0,2)} op_sel_hi:[1,0,0]")
            for q in prs: r.append(f"v_pk_mul_f32 {vr(t[q],2)}, {vr(t[q],2)}, {vr(z[q],2)}")
            for q in prs:
                r.append(f"v_exp_f32 v{t[q]}, v{t[q]}")
                r.append(f"v_exp_f32 v{t[q]+1}, v{t[q]+1}")
            for q in prs: r.append(f"v_pk_fma_f32 {vr(t[q],2)}, {vr(t[q],2)}, {vr(VSD,2)}, {vr(VSD,2)} op_sel_hi:[1,0,0]")
            for q in prs:
                r.append(f"v_rcp_f32 v{t[q]}, v{t[q]}")
                r.append(f"v_rcp_f32 v{t[q]+1}, v{t[q]+1}")
            for q in prs: r.append(f"v_pk_mul_f32 {vr(z[q],2)}, {vr(z[q],2)}, {vr(t[q],2)}")
            for q in prs: r.append(f"v_cvt_pk_bf16_f32 v{dst+q}, v{z[q]}, v{z[q]+1}")
        return r
    def gelu_scalar(p, dst):
        r = []
        G = 8
        for g0 in range(0, 32, G):
            es = range(g0, g0 + G)
            z = {q: ACC[p] + q for q in es}
            t = {q: TMP + (q - g0) for q in es}
            for q in es: r.append(f"v_mul_f32 v{t[q]}, v{z[q]}, v{z[q]}")
            for q in es: r.append(f"v_fma_f32 v{t[q]}, v{t[q]}, v{VK1}, v{VK0}")
            for q in es: r.append(f"v_mul_f32 v{t[q]}, v{t[q]}, v{z[q]}")
            for q in es: r.append(f"v_exp_f32 v{t[q]}, v{t[q]}")
            for q in es: r.append(f"v_fma_f32 v{t[q]}, v{t[q]}, v{VSD}, v{VSD}")
            for q in es: r.append(f"v_rcp_f32 v{t[q]}, v{t[q]}")
            for q in es: r.append(f"v_mul_f32 v{z[q]}, v{z[q]}, v{t[q]}")
            for q in es:
                if q & 1: r.append(f"v_cvt_pk_bf16_f32 v{dst+q//2}, v{z[q-1]}, v{z[q]}")
        return r
    e(cs_write(0))
    e([('wl', "csw"), "s_barrier"])
    xst = [f"v_add_f32 v{GRAM+i}, v{GRAM+i}, v{GRAM+4+i}" for i in range(4)]
    xst += [f"v_add_f32 v{SUMA}, v{SUMA}, v{SUMA+4}"]
    for i in range(2): xst.append(f"v_cndmask_b32 v{GRAM+i}, v{GRAM+2*i}, v{GRAM+2*i+1}, s[52:53]")
    xst.append(f"v_cndmask_b32 v{GRAM}, v{GRAM}, v{GRAM+1}, s[54:55]")
    xst += halfsum(GRAM, 14) + halfsum(SUMA, 15)
    xst += ln_stats(SUMA, GRAM, D, VMX, VSD, VMX + 1)
    xst += lines(f"""
    v_lshrrev_b32 v14, 16, v{VMX}
    v_or_b32 v14, v14, v{VMX}
    v_xor_b32 v14, 0x80008000, v14
    v_cndmask_b32 v{BM}, v14, 0, s[40:41]
    v_cndmask_b32 v{BM+1}, v14, 0, s[40:41]
    v_cndmask_b32 v{BM+2}, v14, 0, s[40:41]
    v_cndmask_b32 v{BM+3}, v14, 0, s[40:41]
    """)
    consts = lines(f"""
    v_mul_f32 v{VK0}, {f32(c0)}, v{VMX+1}
    v_mul_f32 v{VK1}, v{VMX+1}, v{VMX+1}
    v_mul_f32 v{VK1}, v{VK1}, v{VMX+1}
    v_mul_f32 v{VK1}, {f32(c1)}, v{VK1}
    """)
    MERGE = OPT.get("k1_merge", 0)
    e(cs_apply(0, xst))
    e(consts + (touches if TAT >= 28 else []))
    B = gelu_scalar(0, Z2P) if MERGE else gelu_pack(0, Z2P)
    dots = []
    for q in range(16):
        for (acc, s0) in ((SUMA, "s48"), (SUMA + 4, f"v{Z2P+q}")):
            if q < 4: dots.append(f"v_dot2_f32_bf16 v{acc+q}, {s0}, v{Z2P+q}, 0")
            else: dots.append(f"v_dot2c_f32_bf16 v{acc+(q&3)}, {s0}, v{Z2P+q}")
    B.append(dots)
    def sum4(dst, b):
        return [f"v_add_f32 v{b}, v{b}, v{b+1}", f"v_add_f32 v{b+2}, v{b+2}, v{b+3}", f"v_add_f32 v{dst}, v{b}, v{b+2}"]
    B += sum4(GRN, SUMA) + sum4(GRN + 2, SUMA + 4)
    B += halfsum(GRN, 14) + halfsum(GRN + 2, 15)
    lr, lo = name + "_nretry", name + "_nok"
    pub = [('wv', "nonce")] + lines(f"""
    s_mov_b32 s50, 0
    {lr}:
    v_readfirstlane_b32 s51, v{NON+1}
    s_cmp_lg_u32 s51, 0
    s_cbranch_scc1 {lo}
    s_add_u32 s50, s50, 1
    s_cmp_gt_u32 s50, 0x100000
    s_cbranch_scc1 {lo}
    s_sleep 1
    s_lshl_b32 s32, s25, 3
    v_mov_b32 v11, s32
    global_load_dwordx2 {vr(NON,2)}, v11, s[8:9] sc0 sc1
    s_waitcnt vmcnt(0)
    s_branch {lr}
    {lo}:
    v_mov_b32 v{GRN+1}, v{NON}
    v_mov_b32 v{GRN+3}, v{NON+1}
    s_mul_i32 s42, s34, {14*512}
    s_add_u32 s42, s42, {STATS}
    s_lshl_b32 s32, s26, 9
    s_add_u32 s32, s32, s42
    v_and_b32 v11, 31, v1
    v_lshlrev_b32 v11, 4, v11
    """) + [('v', f"buffer_store_dwordx4 {vr(GRN,4)}, v11, s[20:23], s32 offen sc0 sc1", "pub")] + stamp(3)
    B.append(pub)
    TB = 49152
    light = lines(f"""
    v_and_b32 v15, 31, v1
    v_lshlrev_b32 v15, 4, v15
    v_lshrrev_b32 v14, 5, v1
    v_mul_u32_u24 v14, 3584, v14
    v_add_u32 v15, v15, v14
    v_and_b32 v5, 31, v1
    v_lshlrev_b32 v6, 7, v5
    v_add_u32 v6, s39, v6
    v_add_u32 v6, {TB}, v6
    v_and_b32 v7, 1, v1
    v_lshrrev_b32 v8, 5, v1
    v_xor_b32 v7, v7, v8
    v_bfe_u32 v8, v1, 1, 1
    v_lshl_or_b32 v7, v8, 3, v7
    v_bfe_u32 v8, v1, 3, 1
    v_lshl_or_b32 v7, v8, 2, v7
    v_bfe_u32 v8, v1, 2, 1
    v_lshl_or_b32 v7, v8, 1, v7
    v_lshl_add_u32 v250, v7, 3, v6
    v_lshrrev_b32 v5, 5, v1
    v_bfe_u32 v6, v1, 2, 2
    v_lshl_add_u32 v6, v5, 3, v6
    v_lshlrev_b32 v6, 7, v6
    v_add_u32 v6, s39, v6
    v_add_u32 v6, {TB}, v6
    v_and_b32 v7, 3, v1
    v_bfe_u32 v8, v1, 4, 1
    v_xor_b32 v8, v8, v5
    v_lshl_or_b32 v7, v8, 2, v7
    v_bfe_u32 v8, v1, 2, 1
    v_xor_b32 v7, v7, v8
    v_bfe_u32 v8, v1, 3, 1
    v_lshl_or_b32 v7, v8, 3, v7
    v_lshl_add_u32 v251, v7, 3, v6
    v_lshlrev_b32 v10, 4, v1
    """)
    for q in range(16):
        t = 16 + 2 * q
        light += [f"v_lshlrev_b32 v{t}, 16, v{Z2P+q}", f"v_and_b32 v{t+1}, 0xffff0000, v{Z2P+q}"]
    A = [[('wv', ("w", 13)), "s_barrier"]] + reads(28) + reads(29)
    for k in range(28, 56):
        cm = compute(k)
        A.append(('wl', ("f", k)))
        A += cm[:1]
        if k + 2 < 56: A += reads(k + 2)
        A += cm[1:]
    if MERGE: e(merge(A, B + kvc + light + kvo, OPT.get("k1_ratio", 9.0)))
    else:
        e(B); e(merge(A, kvc + light + kvo, OPT.get("k1_lr", 4.5)))
    e(stamp(4))
    def gran_loads():
        return [('v', f"buffer_load_dwordx4 {vr(GR+4*i,4)}, v15, s[20:23], s42 offen offset:{i*512} sc0 sc1", "gr") for i in range(7)]
    e(cs_write(1))
    e([('wl', "csw"), "s_barrier"])
    e([('l', f"ds_read_b128 {vr(156,4)}, v2", "kr"), ('l', f"ds_read_b128 {vr(160,4)}, v9 offset:1024", "kr")])
    e(cs_apply(1, gran_loads() + [('wl', "kr"), ('v', f"buffer_store_dwordx4 {vr(156,4)}, v4, s[20:23], s68 offen{STF}", "ur"),
                                  ('v', f"buffer_store_dwordx4 {vr(160,4)}, v4, s[20:23], s69 offen{STF}", "ur")] + lines(f"""
    s_lshl_b32 s32, s26, 7
    s_add_u32 s32, s32, s34
    s_lshl_b32 s32, s32, 11
    s_add_u32 s33, s32, {64*2048}
    """)))
    for sub in range(2):
        for g in range(4):
            e(f"v_xor_b32 v{80+4*sub+g}, {(8*sub+2*g) << 3}, v250")
    for sub in range(2):
        for h in range(2):
            e(f"v_xor_b32 v{88+2*sub+h}, {(8*sub+2*h) << 3}, v251")
    g1 = gelu_pack(1, Z1P)
    half = len(g1) // 2
    for sub in range(2):
        e(g1[sub*half:(sub+1)*half])
        for h in range(2):
            e(('v', f"buffer_store_dwordx4 {vr(Z1P+8*sub+4*h,4)}, v10, s[20:23], s{32+sub} offen offset:{h*1024}{STF}", "z1"))
    e(stamp(5))
    lr, lo = name + "_gretry", name + "_gok"
    e(["s_mov_b32 s50, 0", ('wv', "gr"), f"{lr}:"])
    e(lines(f"v_xor_b32 v12, v{GR+1}, v{NON}\nv_xor_b32 v13, v{GR+3}, v{NON+1}\nv_or_b32 v12, v12, v13"))
    for i in range(1, 7):
        e(lines(f"v_xor_b32 v13, v{GR+4*i+1}, v{NON}\nv_xor_b32 v14, v{GR+4*i+3}, v{NON+1}\nv_or3_b32 v12, v12, v13, v14"))
    e(lines(f"""
    v_cmp_ne_u32 vcc, 0, v12
    s_cbranch_vccz {lo}
    s_add_u32 s50, s50, 1
    s_cmp_gt_u32 s50, 0x100000
    s_cbranch_scc1 {lo}
    s_sleep 1
    """))
    e(gran_loads())
    e(lines(f"s_waitcnt vmcnt(0)\ns_branch {lr}\n{lo}:"))
    e(stamp(6))
    for c in (0, 2):
        e([f"v_add3_u32 v12, 0, 0, 0"] if False else [])
        e([f"v_add_f32 v{GR+c}, v{GR+c}, v{GR+4+c}", f"v_add_f32 v{GR+8+c}, v{GR+8+c}, v{GR+12+c}", f"v_add_f32 v{GR+16+c}, v{GR+16+c}, v{GR+20+c}"])
    for c in (0, 2):
        e([f"v_add_f32 v{GR+c}, v{GR+c}, v{GR+8+c}", f"v_add_f32 v{GR+16+c}, v{GR+16+c}, v{GR+24+c}"])
    for c in (0, 2):
        e(f"v_add_f32 v{GR+c}, v{GR+c}, v{GR+16+c}")
    e(halfsum(GR, 13) + halfsum(GR + 2, 14))
    VM2, VR2 = 242, 244
    e(ln_stats(GR, GR + 2, FH, VM2, 13, VR2))
    e([f"v_mul_f32 v{VM2}, v{VM2}, v{VR2}", f"v_sub_f32 v{VM2}, 0, v{VM2}"])
    e(lines(f"""
    s_lshl_b32 s32, s26, 8
    s_lshl_b32 s33, s34, 1
    s_add_u32 s32, s32, s33
    s_lshl_b32 s32, s32, 10
    s_add_u32 s32, s32, {Z2F}
    s_add_u32 s33, s32, {128*1024}
    """))
    for sub in range(2):
        for q in range(8 * sub, 8 * sub + 8):
            t = 16 + 2 * q
            e(f"v_pk_fma_f32 {vr(t,2)}, {vr(t,2)}, {vr(VR2,2)}, {vr(VM2,2)} op_sel_hi:[1,0,0]")
        for q in range(8 * sub, 8 * sub + 8):
            t = 16 + 2 * q
            e(f"v_cvt_pk_bf16_f32 v{Z2P+q}, v{t}, v{t+1}")
            if q & 1: e(('l', f"ds_write_b64 v{80+(q>>1)}, {vr(Z2P+q-1,2)}", ("tw", sub)))
        for ks2 in range(2):
            for h in range(2):
                e(('l', f"ds_read_b64_tr_b16 {vr(140+8*sub+4*ks2+2*h,2)}, v{88+2*sub+h} offset:{(16*ks2+4*h)*128}", ("tr", sub, ks2)))
    for sub in range(2):
        for ks2 in range(2):
            e(('wl', ("tr", sub, ks2)))
            e(f"buffer_store_dwordx4 {vr(140+8*sub+4*ks2,4)}, v10, s[20:23], s{32+sub} offen offset:{ks2*1024}{STF}")
    e(lines(f"""
    s_lshl_b32 s32, s2, 2
    s_add_u32 s32, s32, s24
    s_lshl_b32 s32, s32, 6
    s_add_u32 s32, s32, {FLG}
    s_lshl_b32 s33, s2, 6
    s_add_u32 s33, s33, {YFL}
    v_mov_b32 v12, 0
    buffer_store_dword v12, v12, s[20:23], s32 offen
    buffer_store_dword v12, v12, s[20:23], s33 offen
    """))
    lx = name + "_noxst"
    e(lines(f"""
    s_cmp_lg_u32 s26, 0
    s_cbranch_scc1 {lx}
    v_and_b32 v11, 31, v1
    v_lshlrev_b32 v11, 3, v11
    s_lshl_b32 s32, s34, 8
    s_add_u32 s32, s32, {XST}
    buffer_store_dwordx2 {vr(VMX,2)}, v11, s[20:23], s32 offen
    {lx}:
    """))
    e(stamp_out(0))
    e("s_endpgm")
    e = Em(a)
    e(lines(f"""
    {name}_side:
    s_load_dwordx4 s[4:7], s[0:1], 64
    s_load_dwordx4 s[8:11], s[0:1], 32
    s_load_dwordx2 s[28:29], s[0:1], 80
    s_load_dwordx2 s[40:41], s[0:1], 104
    v_lshrrev_b32 v1, 6, v0
    v_readfirstlane_b32 s24, v1
    v_and_b32 v1, 63, v0
    s_and_b32 s30, s2, 7
    s_sub_u32 s98, s2, 224
    s_lshl_b32 s31, s98, 2
    s_add_u32 s31, s31, s24
    s_lshr_b32 s98, s98, 3
    s_lshl_b32 s98, s98, 2
    s_add_u32 s98, s98, s24
    """))
    if OPT.get("code_pf", 1): e(code_touch("k1", 98, 6, 7))
    e(lines(f"""
    v_lshlrev_b32 v2, 7, v1
    v_lshrrev_b32 v3, 2, v1
    v_and_b32 v4, 3, v1
    v_lshlrev_b32 v4, 7, v4
    v_lshl_add_u32 v3, v3, 12, v4
    s_lshl_b32 s34, s98, 16
    s_lshl_b32 s35, s30, 20
    s_add_u32 s34, s34, s35
    s_lshl_b32 s33, s98, 3
    s_add_u32 s33, s33, s30
    s_lshl_b32 s33, s33, 13
    s_lshl_b32 s36, s31, 13
    s_waitcnt lgkmcnt(0)
    """))
    for i in range(8): e(stamp(i))
    e(srd(12, 4, S * S * 2)); e(srd(16, 8, D * S * 2)); e(srd(44, 28, FH * D * 2)); e(srd(48, 6, S * 2)); e(srd(52, 10, D * 2)); e(srd(20, 40, WS_SIZE))
    NSG = OPT.get("k1_nsg", 8)
    NL = OPT.get("k1_nl", 5)
    if NL:
        e(lines(f"""
        v_bfe_u32 v12, v1, {NL}, 1
        v_and_b32 v13, {(1 << NL) - 1}, v1
        v_lshlrev_b32 v13, 7, v13
        v_lshl_add_u32 v12, v12, 12, v13
        s_add_u32 s37, s98, 112
        s_lshl_b32 s37, s37, 13
        s_add_u32 s37, s37, s35
        buffer_load_dword v25, v12, s[12:15], s37 offen
        """))
    e(["buffer_load_dword v20, v2, s[16:19], s33 offen", f"s_add_u32 s33, s33, {128*8192}", "buffer_load_dword v21, v2, s[16:19], s33 offen",
       "buffer_load_dword v22, v2, s[48:51], 0 offen", "buffer_load_dword v23, v2, s[52:55], 0 offen"])
    for i in range(((1 << NL) // 4) if NL else 0, NSG):
        e(f"buffer_load_dword v{26+i}, v3, s[12:15], s34 offen offset:{i*512}")
    e("buffer_load_dword v24, v2, s[44:47], s36 offen")
    e(stamp_out(0))
    e(f"{name}_end:")
    e("s_endpgm")
    return a

def gen_k2(name):
    a = Asm(); e = Em(a)
    NSLOT = OPT["NSLOT2"]; ZD = OPT["ZD"]
    PST = ["", " sc1"][OPT.get("k2_stf", 0)]
    CB = NSLOT * 8192
    HSZ = 4 * 4160
    CH = HSZ + 4608
    XCH = (CB + 2 * CH + 16383) // 16384 * 16384
    WSZ = 28672
    SLB = 163840 - 4 * WSZ
    assert SLB >= CB
    e(lines(f"""
    s_cmp_ge_u32 s2, 256
    s_cbranch_scc1 {name}_end
    s_load_dwordx4 s[4:7], s[0:1], 64
    s_load_dwordx4 s[8:11], s[0:1], 32
    s_load_dwordx2 s[28:29], s[0:1], 104
    s_load_dwordx2 s[62:63], s[0:1], 0
    s_load_dwordx4 s[64:67], s[0:1], 80
    v_lshrrev_b32 v1, 6, v0
    v_readfirstlane_b32 s24, v1
    v_and_b32 v1, 63, v0
    s_and_b32 s30, s2, 7
    s_lshr_b32 s31, s2, 3
    s_cmp_ge_u32 s2, 224
    s_cbranch_scc1 {name}_pf
    s_and_b32 s32, s30, 1
    s_mul_i32 s32, s32, 28
    s_add_u32 s32, s32, s31
    s_lshr_b32 s25, s32, 3
    s_and_b32 s32, s32, 7
    s_lshr_b32 s26, s30, 1
    s_lshl_b32 s26, s26, 3
    s_add_u32 s26, s26, s32
    s_cmp_ge_u32 s24, 4
    s_cbranch_scc1 {name}_conv
    s_setprio {OPT.get("k2_prio", 1)}
    s_lshl_b32 s27, s25, 2
    s_add_u32 s27, s27, s24
    v_lshrrev_b32 v11, 3, v1
    v_and_b32 v12, 7, v1
    v_lshrrev_b32 v13, 4, v1
    v_lshlrev_b32 v14, 12, v11
    v_xor_b32 v15, v12, v13
    v_lshl_add_u32 v2, v15, 4, v14
    v_xor_b32 v15, 4, v15
    v_lshl_add_u32 v3, v15, 4, v14
    v_add_u32 v3, 0x8000, v3
    v_lshlrev_b32 v4, 4, v1
    s_lshl_b32 s34, s26, 2
    s_add_u32 s34, s34, s24
    s_lshl_b32 s34, s34, 16
    s_lshl_b32 s35, s27, 17
    s_add_u32 s35, s35, {Z2F}
    s_lshl_b32 s36, s24, 11
    s_waitcnt lgkmcnt(0)
    """))
    e(stamp(0))
    e(srd(12, 4, S * S * 2)); e(srd(20, 28, WS_SIZE))
    ZB = 96
    def zreg(k): return ZB + 4 * (k % (ZD + 1))
    def zload(k):
        r = []
        if k % 4 == 0: r.append(f"s_add_u32 s33, s35, {k*1024}")
        r.append(('v', f"buffer_load_dwordx4 {vr(zreg(k),4)}, v4, s[20:23], s33 offen offset:{(k%4)*1024}", ("z", k)))
        return r
    def wdma(st, i2):
        return [f"s_add_u32 m0, s36, {(st % NSLOT)*8192 + i2*1024}"] + ([f"s_add_u32 s38, s34, {st*128}"] if i2 == 0 else []) + \
               [('v', f"buffer_load_dwordx4 v{2+i2}, s[12:15], s38 offen lds", ("w", st))]
    WD = OPT.get("k2_wd", 3)
    assert WD <= NSLOT - 2
    for st in range(WD):
        e(wdma(st, 0)); e(wdma(st, 1))
        for k in range(4 * st, min(4 * st + 4, ZD)): e(zload(k))
    for k in range(4 * WD, ZD): e(zload(k))
    e(srd(16, 6, S * 2))
    e(lines(f"""
    v_and_b32 v11, 31, v1
    v_lshrrev_b32 v12, 5, v1
    v_bfe_u32 v13, v1, 1, 3
    v_xor_b32 v13, v13, v12
    v_lshlrev_b32 v14, 7, v11
    v_lshl_add_u32 v5, v13, 4, v14
    v_xor_b32 v6, 32, v5
    v_xor_b32 v7, 64, v5
    v_xor_b32 v8, 96, v5
    v_lshlrev_b32 v11, 1, v11
    s_lshl_b32 s40, s27, 6
    s_lshl_b32 s37, s26, 1
    s_add_u32 s40, s40, s37
    s_lshl_b32 s40, s40, 11
    s_lshl_b32 s41, s26, 7
    s_mul_i32 s42, s26, 112
    s_lshl_b32 s37, s27, 1
    s_add_u32 s42, s42, s37
    s_lshl_b32 s42, s42, 10
    s_add_u32 s42, s42, {PF}
    s_add_u32 s43, s42, {56*1024}
    """))
    WF = 48
    Z1R = 72
    BIA = 88
    def wreads(k):
        st, ks = k >> 2, k & 3
        return [('l', f"ds_read_b128 {vr(WF+8*(k%3)+4*ts,4)}, v{5+ks} offset:{(st % NSLOT)*8192 + ts*4096}", ("w", k)) for ts in range(2)]
    z1l = [('v', f"buffer_load_dwordx4 {vr(Z1R+4*i,4)}, v4, s[20:23], s40 offen offset:{i*1024}", "z1") for i in range(4)]
    z1l += [('v', f"buffer_load_ushort v{BIA+2*ts}, v11, s[16:19], s41 offen offset:{ts*64}", "z1") for ts in range(2)]
    Z1AT = OPT.get("k2_z1at", 128 - ZD)
    e([('wv', ("w", 0)), "s_barrier"]); e(stamp(1))
    e(wreads(0)); e(wreads(1))
    NOM = OPT.get("x2_nomfma")
    for k in range(128):
        e(('wvl', ("z", k), ("w", k)))
        mm = [f"v_mfma_f32_32x32x16_bf16 {vr(16+16*ts,16)}, {vr(zreg(k),4)}, {vr(WF+8*(k%3)+4*ts,4)}, {'0' if k == 0 else vr(16+16*ts,16)}" for ts in range(2)]
        if not NOM or k == 0: e(mm[0])
        if k + 2 < 128:
            if (k + 2) % 4 == 0: e([('wv', ("w", (k + 2) >> 2)), "s_barrier"])
            e(wreads(k + 2))
        if not NOM or k == 0: e(mm[1])
        st = (k >> 2) + WD
        if st < 32 and (k & 3) < 2: e(wdma(st, k & 3))
        if k + ZD < 128: e(zload(k + ZD))
        if Z1AT <= k < Z1AT + 6: e(z1l[k - Z1AT])
    e(stamp(2))
    e("s_waitcnt vmcnt(0)")
    e([f"v_lshlrev_b32 v{BIA}, 16, v{BIA}", f"v_lshlrev_b32 v{BIA+2}, 16, v{BIA+2}"])
    T = 96
    for q in range(16):
        e([f"v_lshlrev_b32 v{T+2*q}, 16, v{Z1R+q}", f"v_and_b32 v{T+2*q+1}, 0xffff0000, v{Z1R+q}"])
    for ts in range(2):
        for q in range(8):
            e(f"v_pk_add_f32 {vr(16+16*ts+2*q,2)}, {vr(16+16*ts+2*q,2)}, {vr(BIA+2*ts,2)} op_sel_hi:[1,0]")
        for q in range(8):
            e(f"v_pk_mul_f32 {vr(T+16*ts+2*q,2)}, {vr(T+16*ts+2*q,2)}, {vr(16+16*ts+2*q,2)}")
        P = 48 + 8 * ts
        for q in range(8):
            e(f"v_cvt_pk_bf16_f32 v{P+q}, v{T+16*ts+2*q}, v{T+16*ts+2*q+1}")
        for k2 in range(2):
            e(f"v_permlane32_swap_b32 v{P+4*k2}, v{P+4*k2+2}")
            e(f"v_permlane32_swap_b32 v{P+4*k2+1}, v{P+4*k2+3}")
        for k2 in range(2):
            e(f"buffer_store_dwordx4 {vr(P+4*k2,4)}, v4, s[20:23], s40 offen offset:{(2*ts+k2)*1024} sc0 sc1")
    e(stamp(3))
    e(lines(TR_ADDR + f"""
    s_mul_i32 s37, s24, {WSZ}
    s_add_u32 s37, s37, {SLB}
    v_add_u32 v9, s37, v14
    v_xor_b32 v10, 64, v9
    v_add_u32 v5, s37, v4
    s_mul_i32 s35, s24, {7*64*2048}
    s_lshl_b32 s36, s26, 12
    s_add_u32 s35, s35, s36
    s_mul_i32 s44, s26, 28
    s_add_u32 s45, s44, s27
    s_lshl_b32 s45, s45, 6
    s_add_u32 s45, s45, {FLG}
    s_mul_i32 s46, s24, 7
    s_add_u32 s44, s44, s46
    s_lshl_b32 s44, s44, 6
    s_add_u32 s44, s44, {FLG}
    v_min_u32 v6, 6, v1
    v_lshlrev_b32 v6, 6, v6
    v_mov_b32 v7, 1
    v_mov_b32 v8, 0
    s_waitcnt vmcnt(0)
    s_mov_b64 exec, 1
    buffer_store_dword v7, v8, s[20:23], s45 offen sc0 sc1
    s_mov_b64 exec, -1
    """))
    e(stamp(4))
    e(lines(f"""
    s_barrier
    s_mov_b32 s47, 0
    {name}_gp:
    buffer_load_dword v11, v6, s[20:23], s44 offen sc0 sc1
    s_waitcnt vmcnt(0)
    v_cmp_ne_u32 vcc, 1, v11
    s_cbranch_vccz {name}_gok
    s_add_u32 s47, s47, 1
    s_cmp_gt_u32 s47, 0x100000
    s_cbranch_scc0 {name}_gp
    {name}_gok:
    """))
    e(stamp(5))
    e = Em(a)
    PB, WF3 = 96, 80
    def pl(i):
        r = [f"s_add_u32 s35, s35, {64*2048}"] if (i % 2 == 0 and i) else []
        for ts in range(2):
            r.append(('v', f"buffer_load_dwordx4 {vr(PB+8*i+4*ts,4)}, v4, s[20:23], s35 offen offset:{ts*2048 + (i & 1)*1024} sc0 sc1", i))
        return r
    def rd(i):
        b = WF3 + 8 * (i & 1)
        return [('l', f"ds_read_b64_tr_b16 {vr(b+4*sub+2*h,2)}, v{9+sub} offset:{i*2048 + h*512}", ("w", i)) for sub in range(2) for h in range(2)]
    AH = OPT.get("k3_ah", 8)
    for i in range(AH): e(pl(i))
    e(rd(0))
    for i in range(14):
        if i + 1 < 14: e(rd(i + 1))
        e(('wvl', i, ("w", i)))
        b = WF3 + 8 * (i & 1)
        for sub in range(2):
            for ts in range(2):
                acc = 16 + 16 * (2 * sub + ts)
                e(f"v_mfma_f32_32x32x16_bf16 {vr(acc,16)}, {vr(b+4*sub,4)}, {vr(PB+8*i+4*ts,4)}, {'0' if i == 0 else vr(acc,16)}")
            if sub == 0 and i + AH < 14: e(pl(i + AH))
    e(stamp(6))
    for j in range(4):
        for g in range(4):
            e(f"ds_write_b128 v5, {vr(16+16*j+4*g,4)} offset:{j*4096+g*1024}")
        if j == 2: e("s_waitcnt lgkmcnt(8)")
    e(["s_waitcnt lgkmcnt(0)", "s_barrier"])
    e(stamp_out(1))
    e("s_endpgm")
    e = Em(a)
    e(lines(f"""
    {name}_conv:
    s_sub_u32 s38, s24, 4
    s_lshr_b32 s39, s38, 1
    s_and_b32 s27, s38, 1
    s_lshl_b32 s40, s2, 1
    s_add_u32 s40, s40, s39
    s_mul_i32 s41, s39, {CH}
    s_add_u32 s41, s41, {CB}
    s_add_u32 s42, s41, {HSZ}
    s_lshl_b32 s33, s40, 12
    s_waitcnt lgkmcnt(0)
    s_add_u32 s8, s8, s33
    s_addc_u32 s9, s9, 0
    """))
    for i in range(8): e(stamp(i))
    e(srd(12, 8, 4096)); e(srd(16, 10, D * 2)); e(srd(20, 28, WS_SIZE))
    e(lines(f"""
    v_lshlrev_b32 v2, 4, v1
    s_lshl_b32 s34, s27, 11
    v_add_u32 v3, s34, v2
    v_and_b32 v4, 1, v1
    v_lshlrev_b32 v4, 4, v4
    v_add_u32 v5, {(-32) & 0xffffffff}, v4
    v_add_u32 v6, {(-16) & 0xffffffff}, v4
    v_lshlrev_b32 v8, 3, v1
    v_add_u32 v8, s42, v8
    v_mov_b32 v10, 0
    v_mov_b32 v11, 0
    ds_write_b64 v8, v[10:11] offset:4096
    v_and_b32 v9, 15, v1
    v_lshrrev_b32 v10, 4, v1
    v_add_u32 v11, 1, v9
    v_and_b32 v12, 3, v11
    v_mul_u32_u24 v12, 4160, v12
    v_and_b32 v11, 0x1c, v11
    v_lshl_add_u32 v12, v11, 1, v12
    v_lshl_add_u32 v12, v10, 4, v12
    s_lshl_b32 s35, s27, 8
    s_add_u32 s36, s41, s35
    v_add_u32 v50, s36, v12
    v_lshlrev_b32 v12, 5, v9
    v_lshlrev_b32 v13, 4, v10
    v_sub_u32 v13, v13, v12
    s_add_u32 s36, s42, s35
    s_add_u32 s36, s36, 480
    v_add_u32 v51, s36, v13
    s_add_u32 s36, s41, 32
    v_add_u32 v52, s36, v3
    v_add_u32 v53, s41, v4
    s_lshl_b32 s35, s38, 12
    s_add_u32 s35, s35, {XCH}
    v_add_u32 v54, s35, v2
    s_xor_b32 s35, s35, 4096
    v_add_u32 v55, s35, v2
    v_lshlrev_b32 v56, 5, v9
    v_lshl_add_u32 v56, v10, 3, v56
    s_sub_u32 s36, s42, s34
    s_add_u32 s36, s36, {4088 - 3*512}
    v_sub_u32 v57, s36, v56
    s_mul_i32 s43, s40, {URS}
    s_add_u32 s43, s43, s34
    s_add_u32 s43, s43, {UR}
    """))
    HA = 64
    hl = []
    for it in range(2):
        hl.append(('v', f"buffer_load_dwordx4 {vr(HA+8*it,4)}, v3, s[12:15], 0 offen offset:{it*1024}", "h"))
        hl.append(('v', f"buffer_load_dwordx2 {vr(HA+8*it+4,2)}, v3, s[12:15], 0 offen offset:{it*1024+16}", "h"))
    hl.append(('v', f"buffer_load_dwordx4 {vr(HA+16,4)}, v5, s[12:15], 0 offen", "h"))
    hl.append(('v', f"buffer_load_dwordx2 {vr(HA+20,2)}, v6, s[12:15], 0 offen", "h"))
    hl += lines(f"s_mul_i32 s35, s40, {URS}\ns_add_u32 s35, s35, {UR}\ns_add_u32 s35, s35, s34\ns_add_u32 m0, s42, s34")
    hl.append(('v', f"buffer_load_dwordx4 v2, s[20:23], s35 offen lds", "h"))
    hl.append(('v', f"buffer_load_dwordx4 v2, s[20:23], s35 offen offset:1024 lds", "h"))
    hl += lines(f"s_lshl_b32 s35, s40, 1\nv_mov_b32 v7, s35")
    hl.append(('v', f"buffer_load_ushort v60, v7, s[16:19], 0 offen", "h"))
    nb = [0]
    def bar(n=1):
        for _ in range(n):
            e("s_barrier"); nb[0] += 1
    HAT = OPT.get("k2_hat", 1)
    bar(HAT)
    e(hl[:4]); bar(); e(hl[4:]); bar()
    bar(OPT.get("k2_hwait", 3))
    e(('wv', "h"))
    for it in range(3):
        A = HA + 8 * it
        O = 96 + 12 * it
        for q in range(4):
            e(f"v_alignbit_b32 v{O+q}, v{A+q+1}, v{A+q}, 16")
            e(f"v_mov_b32 v{O+4+q}, v{A+q+1}")
            e(f"v_alignbit_b32 v{O+8+q}, v{A+q+2}, v{A+q+1}, 16")
        ad = 52 if it < 2 else 53
        off = it * 1024 if it < 2 else 0
        e(f"ds_write_b128 v{ad}, {vr(A,4)} offset:{off}")
        for c in range(1, 4):
            e(f"ds_write_b128 v{ad}, {vr(O+4*(c-1),4)} offset:{off + c*4160}")
        if it == 2: e("s_waitcnt lgkmcnt(0)")
        if it != 1: bar()
    e(stamp(1))
    FBc = [64, 128]
    def loads(r):
        b = FBc[r & 1]
        lst = []
        for c in range(8):
            lst.append(f"ds_read_b128 {vr(b+32+4*c,4)}, v51 offset:{512*(7-c) + 64*r}")
            lst.append(f"ds_read_b64 {vr(b+4*c,2)}, v50 offset:{64*(8*c+r)}")
            lst.append(f"ds_read_b64 {vr(b+4*c+2,2)}, v50 offset:{64*(8*c+r)+8}")
        return lst
    for l in loads(0)[:12]: e(l)
    e("s_waitcnt lgkmcnt(0)")
    for l in loads(0)[12:]: e(l)
    bar()
    e("s_waitcnt lgkmcnt(0)")
    left = OPT.get("k2_cend", 27) - nb[0]
    PER = -(-144 // (left + 1))
    cnt = 0
    seen = set()
    for r in range(4):
        b = FBc[r & 1]
        nxt = loads(r + 1) if r < 3 else []
        mm = [(c, q) for c in range(8) for q in range(8 - c)]
        for i, (c, q) in enumerate(mm):
            first = (c + q) not in seen; seen.add(c + q)
            if not OPT.get("x2_noconv") or first:
                e(f"v_mfma_f32_16x16x32_bf16 {vr(16+4*(c+q),4)}, {vr(b+4*c,4)}, {vr(b+32+4*q,4)}, {'0' if first else vr(16+4*(c+q),4)}")
                if i < len(nxt): e(nxt[i])
            cnt += 1
            if i in (11, 23, 35): e("s_waitcnt lgkmcnt(0)")
            if cnt % PER == 0 and cnt < 144: bar()
    e(stamp(2))
    for t in range(4):
        e(f"ds_read_b64 {vr(80+2*t,2)}, v57 offset:{(3-t)*512}")
    e(f"v_lshlrev_b32 v60, 16, v60")
    nb_save = nb[0]
    e([f"s_cmp_eq_u32 s27, 0", f"s_cbranch_scc0 {name}_h1"])
    for hf in range(2):
        nb[0] = nb_save
        keep, send = (16, 32) if hf == 0 else (32, 16)
        if hf == 1: e(f"{name}_h1:"); e("s_nop 7")
        for t in range(4):
            e(f"ds_write_b128 v54, {vr(send+4*t,4)} offset:{t*1024}")
        e("s_waitcnt lgkmcnt(0)")
        bar()
        for t in range(4):
            e(f"ds_read_b128 {vr(64+4*t,4)}, v55 offset:{t*1024}")
        for t in range(4):
            Y = keep + 4 * t
            U = 96 + 4 * t
            e(lines(f"""
            v_and_b32 v{U}, 0xffff0000, v{81+2*t}
            v_lshlrev_b32 v{U+1}, 16, v{81+2*t}
            v_and_b32 v{U+2}, 0xffff0000, v{80+2*t}
            v_lshlrev_b32 v{U+3}, 16, v{80+2*t}
            v_fmac_f32 v{Y}, v{U}, v60
            v_fmac_f32 v{Y+1}, v{U+1}, v60
            v_fmac_f32 v{Y+2}, v{U+2}, v60
            v_fmac_f32 v{Y+3}, v{U+3}, v60
            """))
        e("s_waitcnt lgkmcnt(0)")
        bar()
        for t in range(4):
            Y = keep + 4 * t
            e(lines(f"""
            v_add_f32 v{Y}, v{Y}, v{64+4*t}
            v_add_f32 v{Y+1}, v{Y+1}, v{65+4*t}
            v_add_f32 v{Y+2}, v{Y+2}, v{66+4*t}
            v_add_f32 v{Y+3}, v{Y+3}, v{67+4*t}
            v_cvt_pk_bf16_f32 v{112+2*t}, v{Y}, v{Y+1}
            v_cvt_pk_bf16_f32 v{113+2*t}, v{Y+2}, v{Y+3}
            buffer_store_dwordx2 {vr(112+2*t,2)}, v56, s[20:23], s43 offen offset:{t*512} sc0 sc1
            """))
        if hf == 0: e(f"s_branch {name}_hj")
    e(f"{name}_hj:")
    e = Em(a)
    e(srd(12, 64, FH * D * 2)); e(srd(16, 66, S * D * 2)); e(srd(44, 62, S * D * 2))
    XR, ST, YR = 64, 72, 76
    e(lines(f"""
    v_lshrrev_b32 v11, 3, v1
    v_and_b32 v12, 7, v1
    v_bfe_u32 v13, v1, 4, 1
    v_mul_u32_u24 v14, 896, v11
    v_lshlrev_b32 v13, 2, v13
    v_xor_b32 v15, v12, v13
    v_lshl_add_u32 v5, v15, 4, v14
    s_mul_i32 s34, s38, {224*896}
    s_lshl_b32 s35, s25, 7
    s_add_u32 s34, s34, s35
    s_mul_i32 s37, s38, {WSZ}
    s_add_u32 s37, s37, {SLB}
    s_lshl_b32 s48, s26, 1
    s_add_u32 s48, s48, s27
    v_and_b32 v11, 31, v1
    v_mul_u32_u24 v12, 896, v11
    v_lshrrev_b32 v13, 5, v1
    v_lshl_add_u32 v3, v13, 4, v12
    s_mul_i32 s49, s48, {32*896}
    s_lshl_b32 s50, s25, 1
    s_add_u32 s50, s50, s39
    s_lshl_b32 s51, s50, 6
    s_add_u32 s49, s49, s51
    v_lshlrev_b32 v6, 3, v11
    s_lshl_b32 s51, s48, 8
    s_add_u32 s51, s51, {XST}
    v_lshrrev_b32 v7, 2, v1
    v_mul_u32_u24 v7, {URS}, v7
    v_and_b32 v13, 3, v1
    v_lshl_add_u32 v7, v13, 4, v7
    s_mul_i32 s52, s50, {32*URS}
    s_lshl_b32 s53, s48, 6
    s_add_u32 s52, s52, s53
    s_add_u32 s52, s52, {UR}
    s_lshl_b32 s53, s38, 11
    v_lshrrev_b32 v12, 5, v1
    v_bfe_u32 v13, v1, 2, 2
    v_lshl_add_u32 v14, v12, 2, v13
    v_lshlrev_b32 v14, 6, v14
    v_bfe_u32 v15, v1, 4, 1
    v_lshl_add_u32 v14, v15, 5, v14
    v_and_b32 v15, 3, v1
    v_lshl_add_u32 v14, v15, 3, v14
    v_add_u32 v8, s53, v14
    s_lshl_b32 s54, s38, 12
    s_add_u32 s54, s54, {SLB}
    v_add_u32 v9, s54, v2
    v_add_u32 v10, {2*WSZ}, v9
    """))
    e(lines(f"""
    v_and_b32 v50, 15, v1
    v_lshlrev_b32 v50, 6, v50
    s_lshl_b32 s56, s50, 10
    s_add_u32 s56, s56, {YFL}
    s_lshl_b32 s55, s2, 6
    s_add_u32 s55, s55, {YFL}
    v_mov_b32 v51, 1
    v_mov_b32 v52, 0
    """))
    assert nb[0] <= 30, nb[0]
    bar(31 - nb[0])
    e("s_waitcnt vmcnt(0)")
    bar()
    l1 = name + "_nf1"
    e(lines(f"""
    s_cmp_lg_u32 s38, 0
    s_cbranch_scc1 {l1}
    s_mov_b64 exec, 1
    buffer_store_dword v51, v52, s[20:23], s55 offen sc0 sc1
    s_mov_b64 exec, -1
    {l1}:
    """))
    e(stamp(3))
    e([f"buffer_load_dwordx4 {vr(XR,4)}, v3, s[44:47], s49 offen", f"buffer_load_dwordx4 {vr(XR+4,4)}, v3, s[44:47], s49 offen offset:32",
       f"buffer_load_dwordx2 {vr(ST,2)}, v6, s[20:23], s51 offen"])
    NPRE = OPT.get("k3_pre", 28)
    def wd(i): return [f"s_add_u32 m0, s37, {i*1024}", f"s_add_u32 s33, s34, {8*i*896}", f"buffer_load_dwordx4 v5, s[12:15], s33 offen lds"]
    for i in range(28): e(wd(i))
    e(["s_waitcnt vmcnt(0)", "s_barrier"])
    e(stamp(4))
    lp, lo = name + "_poll", name + "_pok"
    e(lines(f"""
    s_mov_b32 s57, 0
    {lp}:
    buffer_load_dword v53, v50, s[20:23], s56 offen sc0 sc1
    s_waitcnt vmcnt(0)
    v_cmp_ne_u32 vcc, 1, v53
    s_cbranch_vccz {lo}
    s_add_u32 s57, s57, 1
    s_cmp_gt_u32 s57, 0x100000
    s_cbranch_scc0 {lp}
    {lo}:
    """))
    e(stamp(5))
    e(lines(f"""
    s_mov_b32 m0, s53
    s_add_u32 s33, s52, {16*URS}
    buffer_load_dwordx4 v7, s[20:23], s52 offen sc0 sc1 lds
    s_add_u32 m0, s53, 1024
    s_nop 0
    buffer_load_dwordx4 v7, s[20:23], s33 offen sc0 sc1 lds
    """))
    for k2 in range(2):
        e(f"v_permlane32_swap_b32 v{XR+4*k2}, v{XR+4*k2+2}")
        e(f"v_permlane32_swap_b32 v{XR+4*k2+1}, v{XR+4*k2+3}")
    X, Y, T = 16, 32, 160
    for q in range(8):
        e([f"v_lshlrev_b32 v{X+2*q}, 16, v{XR+q}", f"v_and_b32 v{X+2*q+1}, 0xffff0000, v{XR+q}"])
    for q in range(16): e(f"v_sub_f32 v{T+q}, v{X+q}, v{ST}")
    for q in range(16): e(f"v_mul_f32 v{T+q}, v{T+q}, v{ST+1}")
    e(lines(f"v_mov_b32 v176, {f32(-math.log2(math.e))}\nv_mov_b32 v178, 1.0\ns_waitcnt vmcnt(0)"))
    for g in range(4):
        e(f"ds_read_b64_tr_b16 {vr(YR+2*g,2)}, v8 offset:{g*512}")
    e("s_waitcnt lgkmcnt(0)")
    for q in range(8):
        e([f"v_lshlrev_b32 v{Y+2*q}, 16, v{YR+q}", f"v_and_b32 v{Y+2*q+1}, 0xffff0000, v{YR+q}"])
    for q in range(16): e(f"v_mul_f32 v{Y+q}, v{Y+q}, v{T+q}")
    e("s_barrier")
    e(stamp(6))
    R = 96
    for wv in range(4):
        for g in range(4):
            e(('l', f"ds_read_b128 {vr(R+16*wv+4*g,4)}, v{9 + (wv >> 1)} offset:{(wv & 1)*WSZ + g*1024}", ("rr", wv)))
        if wv == 2: e(('wl', ("rr", 1)))
    O = R
    for q in range(8): e(f"v_pk_add_f32 {vr(O+2*q,2)}, {vr(O+2*q,2)}, {vr(R+16+2*q,2)}")
    for wv in (2, 3):
        e(('wl', ("rr", wv)))
        for q in range(8): e(f"v_pk_add_f32 {vr(O+2*q,2)}, {vr(O+2*q,2)}, {vr(R+16*wv+2*q,2)}")
    for q in range(8): e(f"v_pk_mul_f32 {vr(T+2*q,2)}, {vr(O+2*q,2)}, {vr(176,2)} op_sel_hi:[1,0]")
    for q in range(16): e(f"v_exp_f32 v{T+q}, v{T+q}")
    for q in range(8): e(f"v_pk_mul_f32 {vr(O+2*q,2)}, {vr(O+2*q,2)}, {vr(Y+2*q,2)}")
    for q in range(8): e(f"v_pk_add_f32 {vr(T+2*q,2)}, {vr(T+2*q,2)}, {vr(178,2)} op_sel_hi:[1,0]")
    for q in range(16): e(f"v_rcp_f32 v{T+q}, v{T+q}")
    for q in range(8): e(f"v_pk_fma_f32 {vr(T+2*q,2)}, {vr(T+2*q,2)}, {vr(O+2*q,2)}, {vr(X+2*q,2)}")
    P = 64
    for q in range(8): e(f"v_cvt_pk_bf16_f32 v{P+q}, v{T+2*q}, v{T+2*q+1}")
    for k2 in range(2):
        e(f"v_permlane32_swap_b32 v{P+4*k2}, v{P+4*k2+2}")
        e(f"v_permlane32_swap_b32 v{P+4*k2+1}, v{P+4*k2+3}")
    for k2 in range(2):
        e(f"buffer_store_dwordx4 {vr(P+4*k2,4)}, v3, s[16:19], s49 offen offset:{k2*32}")
    e(stamp_out(1))
    e("s_endpgm")
    e = Em(a)
    first_sg = OPT.get("k1_nsg", 8)
    nsg = 8 - first_sg
    e(lines(f"""
    {name}_pf:
    s_sub_u32 s32, s31, 28
    s_lshl_b32 s32, s32, 3
    s_add_u32 s32, s32, s24
    v_lshlrev_b32 v2, 7, v1
    v_lshrrev_b32 v3, 2, v1
    v_and_b32 v4, 3, v1
    v_lshlrev_b32 v4, 7, v4
    v_lshl_add_u32 v3, v3, 12, v4
    s_lshl_b32 s33, s32, 3
    s_add_u32 s33, s33, s30
    s_lshl_b32 s33, s33, 13
    s_and_b32 s34, s32, 15
    s_lshl_b32 s34, s34, 16
    s_lshl_b32 s35, s30, 20
    s_add_u32 s34, s34, s35
    s_lshr_b32 s35, s32, 4
    s_lshl_b32 s35, s35, 9
    s_add_u32 s34, s34, s35
    s_add_u32 s34, s34, {first_sg*512}
    s_waitcnt lgkmcnt(0)
    """))
    for i in range(8): e(stamp(i))
    e(srd(12, 8, D * S * 2)); e(srd(16, 4, S * S * 2)); e(srd(20, 28, WS_SIZE))
    if OPT.get("code_pf", 1): e(code_touch("k2", 32, 20, 21, start="k2_kernel", sp=68))
    if OPT["k2_zpf"]:
        for i in range(nsg // 2):
            e([f"buffer_load_dword v{9+i}, v3, s[16:19], s34 offen", "s_add_u32 s34, s34, 1024"])
    if OPT.get("k2_k3pf2", 1):
        e(srd(52, 64, FH * D * 2)); e(srd(56, 62, S * D * 2))
        e(lines(f"""
        s_lshl_b32 s45, s32, 13
        s_lshr_b32 s46, s30, 1
        s_mul_i32 s46, s46, {512*896}
        s_min_u32 s47, s32, 27
        s_lshl_b32 s47, s47, 14
        s_add_u32 s46, s46, s47
        s_add_u32 s47, s46, 8192
        """))
        for i in range(4):
            e([f"buffer_load_dword v{24+i}, v2, s[52:55], s45 offen", f"s_add_u32 s45, s45, {32*8192}"])
        e(["buffer_load_dword v28, v2, s[56:59], s46 offen", "buffer_load_dword v29, v2, s[56:59], s47 offen"])
    e(stamp_out(1))
    e(f"{name}_end:")
    e("s_endpgm")
    return a, 163840, max(ZB + 4 * (ZD + 1), 208)

HEADER = open("recurrent_scan__ssm_conv_h3__mixer_gmlp__prompt.s.ref").read().split("; Override")[0]

def build(kernels, path):
    out = HEADER
    for (name, a, grid, block, lds, vg, acc) in kernels:
        out += f"; @launch kernel={name} grid=({grid},1,1) block=({block},1,1) lds={lds}\n"
    out += '.amdgcn_target "amdgcn-amd-amdhsa--gfx950"\n.text\n'
    for (name, a, grid, block, lds, vg, acc) in kernels:
        out += kernel_header(name) + a.text()
    out += 'code_end:\n.section .rodata,"a"\n'
    for (name, a, grid, block, lds, vg, acc) in kernels:
        out += kernel_desc(name, vg, accum=acc)
    open(path, "w").write(out)

if __name__ == "__main__":
    args = sys.argv[1:]
    if "--diag" in args:
        DIAG = True
        args.remove("--diag")
    for x in list(args):
        if "=" in x:
            k, v = x.split("=")
            OPT[k] = float(v) if "." in v else int(v)
            args.remove(x)
    k2, lds2, vg2 = gen_k2("k2_kernel")
    ks = [("k1_kernel", gen_k1("k1_kernel"), 256, 256, 163840, 368, 256),
          ("k2_kernel", k2, 256, 512, lds2, max(vg2, 192), None)]
    build(ks, args[0] if args else "out.s")
```
